```python
import torch

def _softmax(x, axis=-1):
    return torch.softmax(x, dim=axis)
def _gelu(x):
    return torch.nn.functional.gelu(x, approximate="tanh")
def _silu(x):
    return torch.nn.functional.silu(x)
def _sigmoid(x):
    return torch.sigmoid(x)
def _layernorm(x, axis=-1, eps=1e-5):
    m = x.mean(dim=axis, keepdim=True)
    v = x.var(dim=axis, keepdim=True, unbiased=False)
    return (x - m) / torch.sqrt(v + eps)
def _scatter_add(tgt, idx, src, axis=0):
    return tgt.clone().index_add_(axis, idx, src)
def _segment_sum(src, seg, n):
    out = torch.zeros((n,) + src.shape[1:], dtype=src.dtype)
    return out.index_add_(0, seg, src)
def _pad(x, pw):
    flat = tuple(v for pair in reversed(pw) for v in pair)
    return torch.nn.functional.pad(x, flat)

kernel_name = 'gated_mix__softmax_full_mha__mixer_channel_mlp__prompt'

def setup_inputs():

    _w = (lambda a: (lambda t: t.to(torch.bfloat16) if t.is_floating_point() else t)(torch.as_tensor(a)))
    def _A_setup():
        B, S, D = 1, 2048, 640
        return {
            "x": _w((lambda *s: torch.randn(*s, dtype=torch.bfloat16) * 0.05)(B, S, D)),
            "wqkv": _w((lambda *s: torch.randn(*s, dtype=torch.bfloat16) * 0.8)(D, 3 * D)),
            "wo": _w((lambda *s: torch.randn(*s, dtype=torch.bfloat16) * 0.1)(D, D)),
        }
    _A_in = _A_setup()

    def _B_setup():
        B, S, D, F = 1, 2048, 640, 1536
        return {
            "x": _w((lambda *s: torch.randn(*s, dtype=torch.bfloat16) * 0.05)(B, S, D)),
            "w1": _w((lambda *s: torch.randn(*s, dtype=torch.bfloat16) * 1.6)(D, F) * (D ** -0.5)),
            "b1": _w((lambda *s: torch.randn(*s, dtype=torch.bfloat16) * 1.6)(F)),
            "w2": _w((lambda *s: torch.randn(*s, dtype=torch.bfloat16) * 0.05)(F, D) * (F ** -0.5)),
            "b2": _w((lambda *s: torch.randn(*s, dtype=torch.bfloat16) * 0.05)(D)),
        }
    _B_in = _B_setup()

    return {
        "A_x": _A_in["x"],
        "A_wqkv": _A_in["wqkv"],
        "A_wo": _A_in["wo"],
        "B_x": _B_in["x"],
        "B_w1": _B_in["w1"],
        "B_b1": _B_in["b1"],
        "B_w2": _B_in["w2"],
        "B_b2": _B_in["b2"],
        "gate_w": _w((lambda *s: torch.randn(*s, dtype=torch.bfloat16) * 0.05)(640) * 16.0),
    }

def reference(A_x, A_wqkv, A_wo, B_x, B_w1, B_b1, B_w2, B_b2, gate_w):
    def _A_ref(x, wqkv, wo):
        B, S, D = x.shape
        H = 32; Dh = D // H
        qkv = (lambda x, *d: x.permute(*d))((x @ wqkv).reshape(B, S, 3, H, Dh), 2, 0, 3, 1, 4)
        q, k, v = qkv[0], qkv[1], qkv[2]
        scale = Dh ** -0.5
        scores = torch.einsum("bhqd,bhkd->bhqk", q, k) * scale
        p = _softmax(scores, axis=-1)
        o = torch.einsum("bhqk,bhkd->bhqd", p, v)
        return (lambda x, *d: x.permute(*d))(o, 0, 2, 1, 3).reshape(B, S, D) @ wo

    def _B_ref(x, w1, b1, w2, b2):
        y = _layernorm(x, axis=-1)
        h = _gelu(torch.einsum("bsd,df->bsf", y, w1) + b1)
        return torch.einsum("bsf,fd->bsd", h, w2) + b2

    x = A_x
    g = _sigmoid((x * gate_w).sum(-1, keepdims=True))
    a = _A_ref(x, A_wqkv, A_wo)
    b = _B_ref(x, B_w1, B_b1, B_w2, B_b2)
    return g * a + (1 - g) * b
```

```python
import re


def vr(r, n=1, kind="v"):
    if n == 1:
        return f"{kind}{r}"
    return f"{kind}[{r}:{r + n - 1}]"


class Reg:
    def __init__(self, kind, idx):
        self.kind, self.idx = kind, idx

    def r(self, n=1, off=0):
        return vr(self.idx + off, n, self.kind)

    def __repr__(self):
        return f"{self.kind}{self.idx}"


class Asm:
    def __init__(self):
        self.lines = []
        self.vm = []
        self.lg = []
        self.uid = 0

    def __call__(self, s):
        for l in s.split("\n"):
            l = l.rstrip()
            if l.strip() == "":
                continue
            if not l.startswith((" ", "\t")) and not l.rstrip().endswith(":") and not l.startswith((".", ";")):
                l = "    " + l
            self.lines.append(l)

    def c(self, s):
        self.lines.append("    ; " + s)

    def label(self, name):
        self.lines.append(name + ":")

    def newlabel(self, base):
        self.uid += 1
        return f"L_{base}_{self.uid}"

    def vmem(self, s, tag=None):
        self(s)
        self.vm.append(tag)

    def lds(self, s, tag=None):
        self(s)
        self.lg.append(tag)

    def wait_vm(self, tags=None):
        n = self._need(self.vm, tags)
        if n is None:
            return
        assert n <= 63, f"vmcnt {n} too large"
        self(f"s_waitcnt vmcnt({n})")
        self.vm = self.vm[len(self.vm) - n:] if n else []

    def wait_lg(self, tags=None):
        n = self._need(self.lg, tags)
        if n is None:
            return
        if n > 15:
            n = 15
        self(f"s_waitcnt lgkmcnt({n})")
        self.lg = self.lg[len(self.lg) - n:] if n else []

    def wait_both(self, vtags=None, ltags=None):
        self.wait_vm(vtags)
        self.wait_lg(ltags)

    @staticmethod
    def _need(q, tags):
        if tags is None:
            return 0 if q else None
        if not isinstance(tags, (list, set)):
            tags = [tags]
        last = -1
        for i, t in enumerate(q):
            if t in tags:
                last = i
        if last < 0:
            return None
        return len(q) - 1 - last

    def reset_counters(self):
        self.vm, self.lg = [], []

    def text(self):
        return "\n".join(self.lines) + "\n"


TRANS = ("v_exp_f32", "v_log_f32", "v_rcp_f32", "v_rsq_f32", "v_sqrt_f32", "v_sin_f32", "v_cos_f32",
         "v_exp_f16", "v_rcp_f16", "v_rcp_iflag_f32")
_RANGE = re.compile(r"^(-?)(abs\()?\s*([vas])\[(\d+):(\d+)\]\)?$")
_ONE = re.compile(r"^(-?)(abs\()?\s*([vas])(\d+)\)?$")


def _regs(tok):
    tok = tok.strip()
    m = _RANGE.match(tok)
    if m:
        return {(m.group(3), i) for i in range(int(m.group(4)), int(m.group(5)) + 1)}
    m = _ONE.match(tok)
    if m:
        return {(m.group(3), int(m.group(4)))}
    if tok == "vcc":
        return {("s", "vcc")}
    if tok in ("vcc_lo", "vcc_hi"):
        return {("s", "vcc")}
    if tok in ("exec", "exec_lo", "exec_hi"):
        return {("s", "exec")}
    if tok == "m0":
        return {("s", "m0")}
    return set()


class Ins:
    __slots__ = ("op", "text", "dst", "src", "cls", "passes", "ws", "srcC", "srcAB", "line", "target", "lds_dma",
                 "wide_store_data")

    def __init__(self, text, line):
        self.text, self.line = text, line
        body = text.split(";")[0].strip()
        parts = body.split(None, 1)
        self.op = parts[0]
        rest = parts[1] if len(parts) > 1 else ""
        toks = []
        depth = 0
        cur = ""
        for ch in rest:
            if ch == "[":
                depth += 1
            if ch == "]":
                depth -= 1
            if ch == "," and depth == 0:
                toks.append(cur.strip())
                cur = ""
            else:
                cur += ch
        if cur.strip():
            toks.append(cur.strip())
        mods = ""
        if toks:
            sp = toks[-1].split(None, 1)
            toks[-1] = sp[0]
            mods = sp[1] if len(sp) > 1 else ""
        op = self.op
        self.dst, self.src = set(), set()
        self.passes = 0
        self.ws = 1
        self.srcC = set()
        self.srcAB = set()
        self.target = None
        self.lds_dma = False
        self.wide_store_data = set()
        R = [_regs(t) for t in toks]
        if op.startswith("v_mfma"):
            self.cls = "mfma"
            self.passes = 4 if "16x16" in op else 8
            self.dst = R[0]
            self.srcAB = R[1] | R[2]
            self.srcC = R[3] if len(R) > 3 else set()
            self.src = self.srcAB | self.srcC
        elif op.startswith("v_"):
            self.cls = "valu"
            base = op.replace("_e32", "").replace("_e64", "").replace("_sdwa", "").replace("_dpp", "")
            if base.startswith("v_cmp"):
                self.dst = R[0]
                self.src = set().union(*R[1:]) if len(R) > 1 else set()
                if base.startswith("v_cmpx"):
                    self.dst |= {("s", "exec")}
            elif base.startswith("v_permlane") and "swap" in base:
                self.dst = R[0] | R[1]
                self.src = R[0] | R[1]
            elif base in ("v_add_co_u32", "v_sub_co_u32", "v_subrev_co_u32"):
                self.dst = R[0] | R[1]
                self.src = set().union(*R[2:])
            elif base in ("v_addc_co_u32", "v_subb_co_u32"):
                self.dst = R[0] | R[1]
                self.src = set().union(*R[2:])
            else:
                self.dst = R[0] if R else set()
                self.src = set().union(*R[1:]) if len(R) > 1 else set()
                if base.startswith(("v_fmac", "v_pk_fmac", "v_dot2c", "v_writelane")):
                    self.src |= R[0]
                if base.startswith("v_cndmask") and len(R) == 3:
                    self.src |= {("s", "vcc")}
                if "UNUSED_PRESERVE" in mods:
                    self.src |= R[0]
        elif op.startswith("ds_"):
            self.cls = "ds"
            if op.startswith(("ds_read", "ds_swizzle", "ds_bpermute", "ds_permute")):
                self.dst = R[0]
                self.src = set().union(*R[1:]) if len(R) > 1 else set()
            else:
                self.src = set().union(*R) if R else set()
        elif op.startswith(("buffer_", "global_")):
            self.cls = "vmem"
            allmods = rest
            if op in ("buffer_inv", "buffer_wbl2"):
                pass
            elif "_load" in op:
                if re.search(r"\blds\b", allmods) or "load_lds" in op:
                    self.lds_dma = True
                    self.src = set().union(*R) | {("s", "m0")}
                else:
                    self.dst = R[0]
                    self.src = set().union(*R[1:])
            elif "_store" in op:
                self.src = set().union(*R)
                if "x4" in op or "x3" in op:
                    self.wide_store_data = R[0] if op.startswith("buffer_") else R[1]
            elif "atomic" in op:
                self.src = set().union(*R)
                if "sc0" in allmods:
                    self.dst = R[0]
        elif op.startswith("s_"):
            self.cls = "salu"
            if op == "s_nop":
                self.ws = int(toks[0], 0) + 1
            elif op.startswith(("s_cbranch", "s_branch")):
                self.target = toks[0]
            elif op.startswith(("s_cmp", "s_bitcmp", "s_waitcnt", "s_barrier", "s_endpgm", "s_sleep", "s_setprio")):
                self.src = set().union(*R) if R else set()
            else:
                self.dst = R[0] if R else set()
                self.src = set().union(*R[1:]) if len(R) > 1 else set()
                if "saveexec" in op:
                    self.dst |= {("s", "exec")}
        else:
            self.cls = "other"

    def isv(self, r):
        return r[0] in ("v", "a")


def check_hazards(text, verbose=True, maxrep=40):
    ins, labels = [], {}
    for ln, raw in enumerate(text.split("\n"), 1):
        s = raw.strip()
        if not s or s.startswith(";") or s.startswith("."):
            continue
        m = re.match(r"^([A-Za-z_][\w.$]*):\s*(.*)$", s)
        if m:
            labels[m.group(1)] = len(ins)
            s = m.group(2).strip()
            if not s or s.startswith(";"):
                continue
        ins.append(Ins(s, ln))
    n = len(ins)
    preds = [[] for _ in range(n)]
    for i, I in enumerate(ins):
        nxt = i + 1
        if I.op == "s_endpgm":
            continue
        if I.op == "s_branch":
            t = labels.get(I.target)
            if t is not None and t < n:
                preds[t].append(i)
            continue
        if I.target is not None:
            t = labels.get(I.target)
            if t is not None and t < n:
                preds[t].append(i)
        if nxt < n:
            preds[nxt].append(i)
    problems = []

    def need(P, C):
        w = 0
        Pv = {r for r in P.dst if r[0] in "va"}
        Ps = {r for r in P.dst if r[0] == "s"}
        if P.cls == "valu":
            if C.cls == "mfma" and Pv & C.src:
                w = max(w, 2)
            if C.cls == "valu":
                if P.op.replace("_e32", "").replace("_e64", "") in TRANS and Pv & C.src and \
                        C.op.replace("_e32", "").replace("_e64", "") not in TRANS:
                    w = max(w, 1)
                if P.op.replace("_e32", "").replace("_e64", "") in TRANS and Pv & C.src:
                    w = max(w, 1)
                if C.op.startswith("v_permlane") and Pv & C.src:
                    w = max(w, 2)
                if ("dpp" in C.text or "row_" in C.text or "quad_perm" in C.text) and Pv & C.src:
                    w = max(w, 2)
                if C.op.startswith(("v_readlane", "v_readfirstlane")) and Pv & C.src:
                    w = max(w, 1)
                if Ps & C.src:
                    w = max(w, 2)
                    if C.op.startswith(("v_readlane", "v_writelane")):
                        w = max(w, 4)
                if ("sdwa" in P.text or "op_sel" in P.text and not P.op.startswith("v_pk")) and Pv & (C.src | C.dst):
                    w = max(w, 1)
            if P.op.startswith("v_dot") and Pv & (C.src | C.dst):
                if not (C.op == P.op and not (Pv & (C.src - C.dst)) ):
                    w = max(w, 3)
            if C.cls == "vmem" and Ps & C.src:
                w = max(w, 5)
            if ("s", "exec") in P.dst and C.cls == "mfma":
                w = max(w, 4)
        if P.cls == "mfma":
            p8 = P.passes == 8
            if C.cls == "mfma":
                if Pv & C.srcAB:
                    w = max(w, 12 if p8 else 8)
                if Pv & C.srcC:
                    if not (C.srcC == P.dst and C.passes == P.passes):
                        w = max(w, 10 if p8 else 6)
                elif Pv & C.dst and not (Pv & C.srcC):
                    w = max(w, 10 if p8 else 6)
            elif C.cls in ("valu", "ds", "vmem"):
                if Pv & (C.src | C.dst):
                    w = max(w, 12 if p8 else 8)
            if C.cls == "valu" and P.srcC & {r for r in C.dst if r[0] in "va"}:
                w = max(w, 7 if p8 else 3)
        if P.cls == "vmem" and P.wide_store_data:
            if C.cls == "valu" and P.wide_store_data & C.dst:
                w = max(w, 2)
            elif P.wide_store_data & C.dst:
                w = max(w, 1)
        if P.cls == "salu" and ("s", "m0") in P.dst and C.lds_dma:
            w = max(w, 1)
        return w

    MAXW = 12
    for ci, C in enumerate(ins):
        if C.cls not in ("valu", "mfma", "ds", "vmem"):
            continue
        stack = [(p, 0) for p in preds[ci]]
        seen = {}
        while stack:
            pi, dist = stack.pop()
            if pi in seen and seen[pi] <= dist:
                continue
            seen[pi] = dist
            P = ins[pi]
            w = need(P, C)
            if w > dist:
                problems.append((C.line, f"line {C.line}: '{C.text}' needs {w} wait states after line {P.line} '{P.text}', has {dist}"))
            nd = dist + P.ws
            if nd < MAXW:
                for q in preds[pi]:
                    stack.append((q, nd))
    problems = sorted(set(problems))
    if verbose:
        for _, p in problems[:maxrep]:
            print("HAZARD", p)
        print(f"hazard check: {len(problems)} problem(s) in {n} instructions")
    return problems
```

```python
from asmlib import Asm, vr

S, D, H, F = 2048, 640, 32, 1536

WS_STATS = 0x0
WS_FLAG = 0x10000
WS_QLO = 0x100000
WS_QHI = 0x300000
WS_KLO = 0x400000
WS_KHI = 0x600000
WS_V = 0x700000
WS_H = 0xA00000
WS_O = 0x1000000
WS_SIZE = 0x1400000

SRD_X, SRD_WQKV, SRD_WO, SRD_W1, SRD_W2, SRD_WS, SRD_OUT = 4, 8, 12, 16, 20, 24, 28
S_B1, S_B2, S_GATE, S_DBG = 32, 34, 36, 38
S_WAVE = 40
S_WG = 41


def srd(n):
    return f"s[{n}:{n + 3}]"


def sp(n):
    return f"s[{n}:{n + 1}]"


def prologue(a, nwg=256):
    a(f"s_cmp_ge_u32 s2, {nwg}")
    a("s_cbranch_scc1 L_exit_" + a.kname)
    a(f"s_load_dwordx2 {sp(SRD_X)}, s[0:1], 0")
    a(f"s_load_dwordx2 {sp(SRD_WQKV)}, s[0:1], 8")
    a(f"s_load_dwordx2 {sp(SRD_WO)}, s[0:1], 16")
    a(f"s_load_dwordx2 {sp(SRD_W1)}, s[0:1], 32")
    a(f"s_load_dwordx2 {sp(S_B1)}, s[0:1], 40")
    a(f"s_load_dwordx2 {sp(SRD_W2)}, s[0:1], 48")
    a(f"s_load_dwordx2 {sp(S_B2)}, s[0:1], 56")
    a(f"s_load_dwordx2 {sp(S_GATE)}, s[0:1], 64")
    a(f"s_load_dwordx2 {sp(SRD_OUT)}, s[0:1], 72")
    a(f"s_load_dwordx2 {sp(S_DBG)}, s[0:1], 80")
    a(f"s_load_dwordx2 {sp(SRD_WS)}, s[0:1], 88")
    a("v_lshrrev_b32 v1, 6, v0")
    a(f"s_mov_b32 s{S_WG}, s2")
    for r, sz in ((SRD_X, S * D * 2), (SRD_WQKV, D * 3 * D * 2), (SRD_WO, D * D * 2), (SRD_W1, D * F * 2),
                  (SRD_W2, F * D * 2), (SRD_WS, WS_SIZE), (SRD_OUT, S * D * 2)):
        a(f"s_mov_b32 s{r + 2}, {sz}")
        a(f"s_mov_b32 s{r + 3}, 0x00020000")
    a(f"v_readfirstlane_b32 s{S_WAVE}, v1")
    a("s_waitcnt lgkmcnt(0)")


def kernel_header(name):
    return f""".globl {name}
.p2align 8
.type {name},@function
{name}:
"""


def kernel_desc(name, vgpr, accum, sgpr=102):
    return f""".amdhsa_kernel {name}
  .amdhsa_next_free_vgpr {vgpr}
  .amdhsa_next_free_sgpr {sgpr}
  .amdhsa_accum_offset {accum}
  .amdhsa_group_segment_fixed_size 0
  .amdhsa_kernarg_size 96
  .amdhsa_user_sgpr_count 2
  .amdhsa_user_sgpr_kernarg_segment_ptr 1
  .amdhsa_system_sgpr_workgroup_id_x 1
  .amdhsa_float_denorm_mode_32 3
  .amdhsa_float_denorm_mode_16_64 3
.end_amdhsa_kernel
"""


def f32bits(x):
    import struct
    return struct.unpack("<I", struct.pack("<f", x))[0]


def fhex(x):
    return f"0x{f32bits(x):08x}"


WS_PROF = 0x1300000
PROFILE = False


def stamp(a, idx):
    if not PROFILE_ON[0]:
        return
    a("s_waitcnt lgkmcnt(0)")
    a("s_memtime s[90:91]")
    a("s_memrealtime s[92:93]")
    a("s_waitcnt lgkmcnt(0)")
    a.lg = []
    a(f"s_lshl_b32 s94, s{S_WG}, 2")
    a(f"s_add_u32 s94, s94, s{S_WAVE}")
    a("s_lshl_b32 s94, s94, 3")
    a(f"s_add_u32 s94, s94, {WS_PROF + idx * 8192}")
    a("v_mov_b32 v254, s90")
    a("v_mov_b32 v255, s92")
    a("s_mov_b64 s[96:97], exec")
    a("s_mov_b64 exec, 1")
    a(f"v_mov_b32 v253, 0")
    a(f"buffer_store_dwordx2 v[254:255], v253, {srd(SRD_WS)}, s94 offen")
    a("s_mov_b64 exec, s[96:97]")
    if a.vm is not None:
        a.vm.append("stamp")


PROFILE_ON = [False]
```

```python
from common import *

TILE = 2688
BUF = 8 * TILE
XCH = 2 * BUF
XFLAG = XCH + 24576
XMAX = XFLAG + 64

S_HEAD, S_QB, S_QQ, S_KH = 46, 47, 48, 49
S_LK, S_LH, S_LV = 50, 51, 52
S_IT = 53
S_T = 54
S_LK0, S_LH0, S_LV0 = 64, 65, 66
S_EXEC = 68
S_MODE = 70
S_LO32 = 72

V_L = 1
V_KA, V_KH, V_VA = 2, 3, 4
G_K, G_H, G_V = 5, 6, 7
W_K, W_H, W_V = 8, 9, 10
V_TOK = 13
V_T = 14
Q = 20
KB = 44
VB = 56
SS = 72
PP = 104
STG = 120
NEGM = 144
TMP = 208


def qlo(q): return f"v[{Q + 6 * q}:{Q + 6 * q + 3}]"
def qhi(q): return f"v[{Q + 6 * q + 4}:{Q + 6 * q + 5}]"
def klo(t): return f"v[{KB + 6 * (t % 2)}:{KB + 6 * (t % 2) + 3}]"
def khi(t): return f"v[{KB + 6 * (t % 2) + 4}:{KB + 6 * (t % 2) + 5}]"
def vfr(t, f): return f"v[{VB + 8 * (t % 2) + 4 * f}:{VB + 8 * (t % 2) + 4 * f + 3}]"
def sreg(n): return SS + 16 * (n % 2)
def preg(n): return PP + 8 * (n % 2)
def oacc(q): return f"a[{16 * q}:{16 * q + 15}]"


def setup(a):
    T = V_T
    a(f"s_and_b32 s{S_T}, s{S_WG}, 7")
    a(f"s_lshr_b32 s{S_T + 1}, s{S_WG}, 3")
    a(f"s_lshl_b32 s{S_HEAD}, s{S_T}, 2")
    a(f"s_lshr_b32 s{S_T + 2}, s{S_T + 1}, 3")
    a(f"s_add_u32 s{S_HEAD}, s{S_HEAD}, s{S_T + 2}")
    a(f"s_and_b32 s{S_QB}, s{S_T + 1}, 7")
    a(f"s_and_b32 s{S_QQ}, s{S_WAVE}, 1")
    a(f"s_lshr_b32 s{S_KH}, s{S_WAVE}, 1")
    a(f"s_mov_b32 s{S_LO32}, -1")
    a(f"s_mov_b32 s{S_LO32 + 1}, 0")
    a(f"v_and_b32 v{V_L}, 63, v0")
    a(f"v_and_b32 v{V_TOK}, 31, v0")
    a(f"s_mul_i32 s{S_T}, s{S_KH}, {4 * TILE}")
    a(f"v_lshl_add_u32 v{V_KA}, v{V_L}, 4, s{S_T}")
    a(f"s_add_u32 s{S_T + 1}, s{S_T}, 1024")
    a(f"v_lshl_add_u32 v{V_KH}, v{V_TOK}, 3, s{S_T + 1}")
    a(f"v_lshrrev_b32 v{T}, 5, v{V_L}")
    a(f"v_mul_u32_u24 v{T + 1}, 352, v{T}")
    a(f"v_min_u32 v{T + 2}, 21, v{V_TOK}")
    a(f"v_lshl_add_u32 v{T + 1}, v{T + 2}, 4, v{T + 1}")
    a(f"s_add_u32 s{S_T + 1}, s{S_T}, 1280")
    a(f"v_add_u32 v{V_VA}, s{S_T + 1}, v{T + 1}")
    a(f"v_lshlrev_b32 v{G_K}, 4, v{V_L}")
    a(f"v_lshlrev_b32 v{G_H}, 4, v{V_TOK}")
    a(f"v_lshl_add_u32 v{G_H}, v{T}, 9, v{G_H}")
    a(f"s_and_b32 s{S_T + 1}, s{S_WAVE}, 1")
    a(f"s_mul_i32 s{S_T + 2}, s{S_T + 1}, 160")
    a(f"v_add_u32 v{T + 3}, s{S_T + 2}, v{V_L}")
    a(f"v_lshlrev_b32 v{G_V}, 4, v{T + 3}")
    a(f"s_lshl_b32 s{S_T + 2}, s{S_KH}, 5")
    a(f"s_lshl_b32 s{S_T + 3}, s{S_T + 1}, 1")
    a(f"s_add_u32 s{S_T + 3}, s{S_T + 3}, s{S_T + 2}")
    a(f"s_lshl_b32 s{S_LK0}, s{S_HEAD}, 16")
    a(f"s_lshl_b32 s{S_T + 4}, s{S_T + 3}, 10")
    a(f"s_add_u32 s{S_LK0}, s{S_LK0}, s{S_T + 4}")
    a(f"s_add_u32 s{S_LK0}, s{S_LK0}, {WS_KLO}")
    a(f"s_lshr_b32 s{S_LH0}, s{S_HEAD}, 1")
    a(f"s_lshl_b32 s{S_LH0}, s{S_LH0}, 15")
    a(f"s_lshl_b32 s{S_T + 4}, s{S_T + 3}, 9")
    a(f"s_add_u32 s{S_LH0}, s{S_LH0}, s{S_T + 4}")
    a(f"s_and_b32 s{S_T + 4}, s{S_HEAD}, 1")
    a(f"s_lshl_b32 s{S_T + 4}, s{S_T + 4}, 3")
    a(f"s_add_u32 s{S_LH0}, s{S_LH0}, s{S_T + 4}")
    a(f"s_add_u32 s{S_LH0}, s{S_LH0}, {WS_KHI}")
    a(f"s_mul_i32 s{S_LV0}, s{S_HEAD}, 81920")
    a(f"s_mul_i32 s{S_T + 4}, s{S_T + 2}, 1280")
    a(f"s_add_u32 s{S_LV0}, s{S_LV0}, s{S_T + 4}")
    a(f"s_add_u32 s{S_LV0}, s{S_LV0}, {WS_V}")
    a(f"s_mul_i32 s{S_T + 4}, s{S_WAVE}, {2 * TILE}")
    a(f"v_lshl_add_u32 v{W_K}, v{V_L}, 4, s{S_T + 4}")
    a(f"v_mul_u32_u24 v{T + 1}, {TILE}, v{T}")
    a(f"v_lshl_add_u32 v{T + 1}, v{V_TOK}, 3, v{T + 1}")
    a(f"s_add_u32 s{S_T + 4}, s{S_T + 4}, 1024")
    a(f"v_add_u32 v{W_H}, s{S_T + 4}, v{T + 1}")
    a(f"s_mul_i32 s{S_T + 4}, s{S_KH}, {4 * TILE}")
    a(f"s_add_u32 s{S_T + 4}, s{S_T + 4}, 1280")
    for m in range(3):
        a(f"v_add_u32 v{T}, {64 * m}, v{T + 3}")
        a(f"v_mul_u32_u24 v{T + 1}, 3277, v{T}")
        a(f"v_lshrrev_b32 v{T + 1}, 16, v{T + 1}")
        a(f"v_mul_u32_u24 v{T + 2}, 20, v{T + 1}")
        a(f"v_sub_u32 v{T}, v{T}, v{T + 2}")
        a(f"v_lshlrev_b32 v{T}, 4, v{T}")
        a(f"v_lshrrev_b32 v{T + 2}, 2, v{T + 1}")
        a(f"v_mul_u32_u24 v{T + 2}, {TILE}, v{T + 2}")
        a(f"v_add_u32 v{T}, v{T}, v{T + 2}")
        a(f"v_and_b32 v{T + 1}, 3, v{T + 1}")
        a(f"v_mul_u32_u24 v{T + 1}, 352, v{T + 1}")
        a(f"v_add3_u32 v{W_V + m}, v{T}, v{T + 1}, s{S_T + 4}")


def init_lds_consts(a):
    T = TMP
    a(f"v_lshrrev_b32 v{T}, 2, v{V_L}")
    a(f"v_mul_u32_u24 v{T}, {TILE}, v{T}")
    a(f"v_and_b32 v{T + 1}, 3, v{V_L}")
    a(f"v_mul_u32_u24 v{T + 1}, 352, v{T + 1}")
    a(f"v_add_u32 v{T}, v{T}, v{T + 1}")
    a(f"v_add_u32 v{T}, {1280 + 320}, v{T}")
    for i in range(4):
        a(f"v_mov_b32 v{T + 4 + i}, 0x3f803f80")
        a(f"v_mov_b32 v{T + 8 + i}, 0")
    a.lds(f"ds_write_b128 v{T}, v[{T + 4}:{T + 7}]", "ci")
    a.lds(f"ds_write_b128 v{T}, v[{T + 8}:{T + 11}] offset:16", "ci")


def load_q(a):
    T = TMP
    a(f"s_lshl_b32 s{S_T}, s{S_QB}, 3")
    a(f"s_lshl_b32 s{S_T + 1}, s{S_QQ}, 2")
    a(f"s_add_u32 s{S_T}, s{S_T}, s{S_T + 1}")
    a(f"s_lshl_b32 s{S_T + 1}, s{S_HEAD}, 16")
    a(f"s_lshl_b32 s{S_T + 2}, s{S_T}, 10")
    a(f"s_add_u32 s{S_T + 1}, s{S_T + 1}, s{S_T + 2}")
    a(f"s_add_u32 s{S_T + 1}, s{S_T + 1}, {WS_QLO}")
    a(f"s_lshr_b32 s{S_T + 2}, s{S_HEAD}, 1")
    a(f"s_lshl_b32 s{S_T + 2}, s{S_T + 2}, 15")
    a(f"s_lshl_b32 s{S_T + 3}, s{S_T}, 9")
    a(f"s_add_u32 s{S_T + 2}, s{S_T + 2}, s{S_T + 3}")
    a(f"s_and_b32 s{S_T + 3}, s{S_HEAD}, 1")
    a(f"s_lshl_b32 s{S_T + 3}, s{S_T + 3}, 3")
    a(f"s_add_u32 s{S_T + 2}, s{S_T + 2}, s{S_T + 3}")
    a(f"s_add_u32 s{S_T + 2}, s{S_T + 2}, {WS_QHI}")
    a(f"v_lshlrev_b32 v{T}, 4, v{V_TOK}")
    for qi in range(4):
        a(f"v_mov_b32 v{Q + 6 * qi + 4}, 0")
        a(f"v_mov_b32 v{Q + 6 * qi + 5}, 0")
    for qi in range(4):
        a.vmem(f"buffer_load_dwordx4 {qlo(qi)}, v{G_K}, {srd(SRD_WS)}, s{S_T + 1} offen offset:{1024 * qi} sc1", "q")
    a(f"s_mov_b64 exec, {sp(S_LO32)}")
    for qi in range(4):
        a.vmem(f"buffer_load_dwordx2 {qhi(qi)}, v{T}, {srd(SRD_WS)}, s{S_T + 2} offen offset:{512 * qi} sc1", "q")
    a("s_mov_b64 exec, -1")


def stage_loads(a):
    a.vmem(f"buffer_load_dwordx4 v[{STG}:{STG + 3}], v{G_K}, {srd(SRD_WS)}, s{S_LK} offen sc1", "stg")
    a.vmem(f"buffer_load_dwordx4 v[{STG + 4}:{STG + 7}], v{G_K}, {srd(SRD_WS)}, s{S_LK} offen offset:1024 sc1", "stg")
    a.vmem(f"buffer_load_dwordx2 v[{STG + 8}:{STG + 9}], v{G_H}, {srd(SRD_WS)}, s{S_LH} offen sc1", "stg")
    a.vmem(f"buffer_load_dwordx4 v[{STG + 10}:{STG + 13}], v{G_V}, {srd(SRD_WS)}, s{S_LV} offen sc1", "stg")
    a.vmem(f"buffer_load_dwordx4 v[{STG + 14}:{STG + 17}], v{G_V}, {srd(SRD_WS)}, s{S_LV} offen offset:1024 sc1", "stg")
    a(f"s_mov_b64 exec, {sp(S_LO32)}")
    a.vmem(f"buffer_load_dwordx4 v[{STG + 18}:{STG + 21}], v{G_V}, {srd(SRD_WS)}, s{S_LV} offen offset:2048 sc1", "stg")
    a("s_mov_b64 exec, -1")
    a(f"s_add_u32 s{S_LK}, s{S_LK}, 4096")
    a(f"s_add_u32 s{S_LH}, s{S_LH}, 2048")
    a(f"s_add_u32 s{S_LV}, s{S_LV}, 5120")


def stage_write_list(buf):
    o = buf * BUF
    return [
        [f"ds_write_b128 v{W_K}, v[{STG}:{STG + 3}] offset:{o}"],
        [f"ds_write_b128 v{W_K}, v[{STG + 4}:{STG + 7}] offset:{o + TILE}"],
        [f"ds_write_b64 v{W_H}, v[{STG + 8}:{STG + 9}] offset:{o}", f"ds_write_b128 v{W_V}, v[{STG + 10}:{STG + 13}] offset:{o}"],
        [f"ds_write_b128 v{W_V + 1}, v[{STG + 14}:{STG + 17}] offset:{o}"],
        [f"s_mov_b64 exec, {sp(S_LO32)}", f"ds_write_b128 v{W_V + 2}, v[{STG + 18}:{STG + 21}] offset:{o}", "s_mov_b64 exec, -1"],
    ]


def kreads(t):
    tt = t % 8
    o = (tt // 4) * BUF + (tt % 4) * TILE
    return [f"ds_read_b128 {klo(t)}, v{V_KA} offset:{o}", f"ds_read_b64 {khi(t)}, v{V_KH} offset:{o}"]


def vreads(t):
    tt = t % 8
    o = (tt // 4) * BUF + (tt % 4) * TILE
    return [f"ds_read_b128 {vfr(t, 0)}, v{V_VA} offset:{o}", f"ds_read_b128 {vfr(t, 1)}, v{V_VA} offset:{o + 704}"]


def s_mfmas(n, mode):
    t, q = n // 4, n % 4
    s = sreg(n)
    c = "0" if mode != "safe" else f"v[{NEGM + 16 * q}:{NEGM + 16 * q + 15}]"
    return [f"v_mfma_f32_32x32x16_bf16 v[{s}:{s + 15}], {klo(t)}, {qlo(q)}, {c}",
            f"v_mfma_f32_32x32x8_bf16 v[{s}:{s + 15}], {khi(t)}, {qhi(q)}, v[{s}:{s + 15}]"]


def pv_mfmas(n):
    t, q = (n // 4), n % 4
    p = preg(n)
    return [f"v_mfma_f32_32x32x16_bf16 {oacc(q)}, {vfr(t, 0)}, v[{p}:{p + 3}], {oacc(q)}",
            f"v_mfma_f32_32x32x16_bf16 {oacc(q)}, {vfr(t, 1)}, v[{p + 4}:{p + 7}], {oacc(q)}"]


def main_loop(a, mode):
    pv = mode != "max"
    a(f"s_mov_b32 s{S_LK}, s{S_LK0}")
    a(f"s_mov_b32 s{S_LH}, s{S_LH0}")
    a(f"s_mov_b32 s{S_LV}, s{S_LV0}")
    stage_loads(a)
    if pv:
        for i in range(64):
            a(f"v_accvgpr_write_b32 a{i}, 0")
        for i in range(8):
            a(f"v_mov_b32 v{PP + 8 + i}, 0")
            a(f"v_mov_b32 v{VB + 8 + i}, 0")
    else:
        for q in range(4):
            a(f"v_mov_b32 v{NEGM + 16 * q}, 0xff800000")
    a.wait_vm()
    for grp in stage_write_list(0):
        for ins in grp:
            if ins.startswith("ds_"):
                a.lds(ins, "w")
            else:
                a(ins)
    stage_loads(a)
    a.vm = []
    a.wait_lg()
    a("s_barrier")
    for r in kreads(0):
        a.lds(r, ("k", 0))
    a.wait_lg()
    for m in s_mfmas(0, mode):
        a(m)
    if pv:
        for r in vreads(0):
            a.lds(r, ("v", 0))
    a("s_nop 11")
    if mode == "fast":
        keep = list(a.lg)
        stamp(a, 10)
        a.lg = keep
    a(f"s_mov_b32 s{S_IT}, 0")
    start_state = list(a.lg)
    L = a.newlabel("att_" + mode)
    a(".p2align 6")
    a.label(L)
    for n in range(32):
        t, q = n // 4, n % 4
        ci, hs = n // 16, n % 16
        s = sreg(n)
        p = preg(n)
        sm = s_mfmas(n + 1, mode)
        pm = pv_mfmas(n - 1) if pv else []
        if q == 3:
            a.wait_lg(("k", t + 1))
        extra = {0: [], 1: [], 2: [], 3: []}
        if q == 0:
            kr = kreads(t + 1)
            extra[0].append((kr[0], ("k", t + 1)))
            extra[1].append((kr[1], ("k", t + 1)))
        if pv and q == 1:
            extra[2].append((vreads(t + 1)[0], ("v", t + 1)))
        if pv and q == 2:
            extra[2].append((vreads(t + 1)[1], ("v", t + 1)))
        if hs == 6:
            a("s_waitcnt vmcnt(0)")
        wl = []
        if 6 <= hs <= 10:
            wl = stage_write_list(1 - ci)[hs - 6]
        mf = [sm[0], sm[1]] + pm
        for g in range(4):
            if pv and g == 2 and q == 1:
                a.wait_lg(("v", t))
            if g < len(mf):
                a(mf[g])
            for ins, tag in extra[g]:
                a.lds(ins, tag)
            if g == 3 or (not pv and g == 1):
                for ins in wl:
                    a(ins)
                wl = []
            if pv:
                for j in range(4):
                    a(f"v_exp_f32 v{s + 4 * g + j}, v{s + 4 * g + j}")
                if g > 0:
                    for j in range(2):
                        a(f"v_cvt_pk_bf16_f32 v{p + 2 * (g - 1) + j}, v{s + 4 * (g - 1) + 2 * j}, v{s + 4 * (g - 1) + 2 * j + 1}")
            else:
                m = NEGM + 16 * q
                if g == 0:
                    a("s_nop 9")
                for j in range(2):
                    a(f"v_max3_f32 v{m}, v{s + 4 * g + 2 * j}, v{s + 4 * g + 2 * j + 1}, v{m}")
        if pv:
            for j in range(2):
                a(f"v_cvt_pk_bf16_f32 v{p + 6 + j}, v{s + 12 + 2 * j}, v{s + 12 + 2 * j + 1}")
        if hs == 11:
            keep = list(a.lg)
            a("s_waitcnt lgkmcnt(0)")
            a("s_barrier")
            a.lg = []
        if hs == 12:
            lab = a.newlabel("noload")
            a(f"s_cmp_ge_u32 s{S_IT}, 3")
            a(f"s_cbranch_scc1 {lab}")
            stage_loads(a)
            a.vm = []
            a.label(lab)
    a(f"s_add_u32 s{S_IT}, s{S_IT}, 1")
    a(f"s_cmp_lt_u32 s{S_IT}, 4")
    a(f"s_cbranch_scc1 {L}")
    assert len(a.lg) == len(start_state), (a.lg, start_state)
    a.wait_lg()
    if pv:
        for m in pv_mfmas(31):
            a(m)


def finish(a, L_redo):
    T = TMP
    R = SS
    OWN = 72
    PAR = 144
    a(f"s_lshl_b32 s{S_T}, s{S_QB}, 3")
    a(f"s_lshl_b32 s{S_T + 1}, s{S_QQ}, 2")
    a(f"s_add_u32 s{S_T}, s{S_T}, s{S_T + 1}")
    a(f"s_lshl_b32 s{S_T + 1}, s{S_KH}, 1")
    a(f"s_add_u32 s{S_T}, s{S_T}, s{S_T + 1}")
    a(f"s_lshl_b32 s{S_T + 1}, s{S_T}, 9")
    a(f"v_lshlrev_b32 v{T}, 4, v{V_TOK}")
    for e in range(2):
        a.vmem(f"buffer_load_dword v{T + 2 + e}, v{T}, {srd(SRD_WS)}, s{S_T + 1} offen offset:{WS_STATS + 8 + 512 * e} sc1", "g")
    a("s_nop 7")
    a("s_nop 3")
    Lk1, Lj = a.newlabel("kh1"), a.newlabel("khj")
    a(f"s_cmp_eq_u32 s{S_KH}, 1")
    a(f"s_cbranch_scc1 {Lk1}")
    for kh in range(2):
        if kh == 1:
            a.label(Lk1)
        for e in range(2):
            for i in range(12):
                a(f"v_accvgpr_read_b32 v{OWN + 12 * e + i}, a{16 * (2 * kh + e) + i}")
                a(f"v_accvgpr_read_b32 v{PAR + 12 * e + i}, a{16 * (2 * (1 - kh) + e) + i}")
        if kh == 0:
            a(f"s_branch {Lj}")
    a.label(Lj)
    a(f"s_mul_i32 s{S_T + 2}, s{S_WAVE}, 6144")
    a(f"s_add_u32 s{S_T + 2}, s{S_T + 2}, {XCH}")
    a(f"v_lshl_add_u32 v{T + 1}, v{V_L}, 4, s{S_T + 2}")
    for i in range(6):
        a.lds(f"ds_write_b128 v{T + 1}, v[{PAR + 4 * i}:{PAR + 4 * i + 3}] offset:{1024 * i}", "x")
    a(f"s_xor_b32 s{S_T + 2}, s{S_WAVE}, 2")
    a(f"s_mul_i32 s{S_T + 2}, s{S_T + 2}, 6144")
    a(f"s_add_u32 s{S_T + 2}, s{S_T + 2}, {XCH}")
    a(f"v_lshl_add_u32 v{T + 1}, v{V_L}, 4, s{S_T + 2}")
    a.wait_lg()
    a("s_barrier")
    for i in range(6):
        a.lds(f"ds_read_b128 v[{PAR + 4 * i}:{PAR + 4 * i + 3}], v{T + 1} offset:{1024 * i}", "x")
    a.wait_lg()
    for i in range(0, 24, 2):
        a(f"v_pk_add_f32 v[{OWN + i}:{OWN + i + 1}], v[{OWN + i}:{OWN + i + 1}], v[{PAR + i}:{PAR + i + 1}]")
    LR = T + 4
    for e in range(2):
        a(f"v_mov_b32 v{T + 6}, v{OWN + 12 * e + 8}")
        a(f"v_mov_b32 v{LR + e}, v{OWN + 12 * e + 8}")
        a("s_nop 1")
        a(f"v_permlane32_swap_b32 v{T + 6}, v{LR + e}")
    if L_redo is not None:
        a(f"s_mov_b64 {sp(S_T + 4)}, 0")
        a(f"v_mov_b32 v{T + 8}, {fhex(2.0 ** -64)}")
        a(f"v_mov_b32 v{T + 9}, {fhex(2.0 ** 64)}")
        a(f"v_mov_b32 v{T + 10}, 0x207")
        for e in range(2):
            a(f"v_cmp_nge_f32 vcc, v{LR + e}, v{T + 8}")
            a(f"s_or_b64 {sp(S_T + 4)}, {sp(S_T + 4)}, vcc")
            a(f"v_cmp_nle_f32 vcc, v{LR + e}, v{T + 9}")
            a(f"s_or_b64 {sp(S_T + 4)}, {sp(S_T + 4)}, vcc")
            for i in range(8):
                a(f"v_cmp_class_f32 vcc, v{OWN + 12 * e + i}, v{T + 10}")
                a(f"s_or_b64 {sp(S_T + 4)}, {sp(S_T + 4)}, vcc")
            for i in range(8, 12):
                a(f"v_cmp_class_f32 vcc, v{OWN + 12 * e + i}, v{T + 10}")
                a(f"s_and_b64 vcc, vcc, {sp(S_LO32)}")
                a(f"s_or_b64 {sp(S_T + 4)}, {sp(S_T + 4)}, vcc")
        lab = a.newlabel("novote")
        a(f"s_cmp_eq_u64 {sp(S_T + 4)}, 0")
        a(f"s_cbranch_scc1 {lab}")
        a(f"v_mov_b32 v{T + 8}, {XFLAG}")
        a(f"v_mov_b32 v{T + 9}, 1")
        a(f"ds_write_b32 v{T + 8}, v{T + 9}")
        a.label(lab)
        a("s_waitcnt lgkmcnt(0)")
        a("s_barrier")
        a(f"v_mov_b32 v{T + 8}, {XFLAG}")
        a(f"ds_read_b32 v{T + 9}, v{T + 8}")
        a("s_waitcnt lgkmcnt(0)")
        a(f"v_readfirstlane_b32 s{S_T + 4}, v{T + 9}")
        a(f"s_cmp_lg_u32 s{S_T + 4}, 0")
        a(f"s_cbranch_scc1 {L_redo}")
    return T, OWN, LR


def store_o(a, T, OWN, LR):
    a.wait_vm("g")
    for e in range(2):
        a(f"v_rcp_f32 v{LR + e}, v{LR + e}")
    a("s_nop 0")
    for e in range(2):
        a(f"v_mul_f32 v{LR + e}, v{LR + e}, v{T + 2 + e}")
    a(f"v_lshrrev_b32 v{T + 8}, 4, v{V_TOK}")
    a(f"v_mul_u32_u24 v{T + 8}, 20480, v{T + 8}")
    a(f"v_and_b32 v{T + 9}, 15, v{V_TOK}")
    a(f"v_lshl_add_u32 v{T + 8}, v{T + 9}, 4, v{T + 8}")
    a(f"v_cmp_le_u32 vcc, 32, v{V_L}")
    a(f"s_mul_i32 s{S_T + 1}, s{S_T}, {2 * 20480}")
    a(f"s_add_u32 s{S_T + 1}, s{S_T + 1}, {WS_O}")
    a(f"s_mul_i32 s{S_T + 2}, s{S_HEAD}, 5")
    for m in range(3):
        for hh in range(2):
            d = S_T + 3 + hh
            a(f"s_add_u32 s{S_T + 5}, s{S_T + 2}, {2 * m + hh}")
            a(f"s_lshr_b32 s{d}, s{S_T + 5}, 3")
            a(f"s_lshl_b32 s{d}, s{d}, 10")
            a(f"s_and_b32 s{S_T + 6}, s{S_T + 5}, 3")
            a(f"s_lshl_b32 s{S_T + 6}, s{S_T + 6}, 8")
            a(f"s_add_u32 s{d}, s{d}, s{S_T + 6}")
            a(f"s_bfe_u32 s{S_T + 6}, s{S_T + 5}, 0x10002")
            a(f"s_lshl_b32 s{S_T + 6}, s{S_T + 6}, 3")
            a(f"s_add_u32 s{d}, s{d}, s{S_T + 6}")
        a(f"v_mov_b32 v{T + 10}, s{S_T + 3}")
        a(f"v_mov_b32 v{T + 11}, s{S_T + 4}")
        a(f"v_cndmask_b32 v{T + 10}, v{T + 10}, v{T + 11}, vcc")
        a(f"v_add_u32 v{T + 12 + m}, v{T + 10}, v{T + 8}")
    for e in range(2):
        for m in range(3):
            r = OWN + 12 * e + 4 * m
            P = T + 16 + 2 * ((3 * e + m) % 4)
            for i in range(4):
                a(f"v_mul_f32 v{r + i}, v{r + i}, v{LR + e}")
            a(f"v_cvt_pk_bf16_f32 v{P}, v{r}, v{r + 1}")
            a(f"v_cvt_pk_bf16_f32 v{P + 1}, v{r + 2}, v{r + 3}")
            if m == 2:
                a(f"s_mov_b64 exec, {sp(S_LO32)}")
            a(f"s_add_u32 s{S_T + 3}, s{S_T + 1}, {e * 2 * 20480}")
            a.vmem(f"buffer_store_dwordx2 v[{P}:{P + 1}], v{T + 12 + m}, {srd(SRD_WS)}, s{S_T + 3} offen sc1", "ost")
            if m == 2:
                a("s_mov_b64 exec, -1")


def max_to_negm(a):
    T = TMP
    for q in range(4):
        m = NEGM + 16 * q
        a(f"v_mov_b32 v{T}, v{m}")
        a("s_nop 1")
        a(f"v_permlane32_swap_b32 v{T}, v{m}")
        a(f"v_max_f32 v{m}, v{m}, v{T}")
    a(f"s_lshl_b32 s{S_T}, s{S_WAVE}, 10")
    a(f"s_add_u32 s{S_T}, s{S_T}, {XCH}")
    a(f"v_lshl_add_u32 v{T + 1}, v{V_L}, 2, s{S_T}")
    for q in range(4):
        a(f"ds_write_b32 v{T + 1}, v{NEGM + 16 * q} offset:{256 * q}")
    a(f"s_xor_b32 s{S_T}, s{S_WAVE}, 2")
    a(f"s_lshl_b32 s{S_T}, s{S_T}, 10")
    a(f"s_add_u32 s{S_T}, s{S_T}, {XCH}")
    a(f"v_lshl_add_u32 v{T + 1}, v{V_L}, 2, s{S_T}")
    a("s_waitcnt lgkmcnt(0)")
    a("s_barrier")
    for q in range(4):
        a(f"ds_read_b32 v{T + 2 + q}, v{T + 1} offset:{256 * q}")
    a("s_waitcnt lgkmcnt(0)")
    for q in range(4):
        m = NEGM + 16 * q
        a(f"v_max_f32 v{m}, v{m}, v{T + 2 + q}")
        a(f"v_sub_f32 v{m}, 0, v{m}")
        for i in range(1, 16):
            a(f"v_mov_b32 v{m + i}, v{m}")
    a("s_barrier")


def body_attn(a, with_fallback=True):
    stamp(a, 8)
    setup(a)
    init_lds_consts(a)
    a(f"v_mov_b32 v{TMP + 12}, {XFLAG}")
    a(f"v_mov_b32 v{TMP + 13}, 0")
    a.lds(f"ds_write_b32 v{TMP + 12}, v{TMP + 13}", "ci")
    load_q(a)
    a.wait_vm("q")
    a.wait_lg()
    stamp(a, 9)
    main_loop(a, "fast")
    stamp(a, 11)
    L_redo = a.newlabel("redo") if with_fallback else None
    L_store = a.newlabel("ostore")
    T, OWN, LR = finish(a, L_redo)
    a.label(L_store)
    vm_state = list(a.vm)
    store_o(a, T, OWN, LR)
    if with_fallback:
        L_done = a.newlabel("attdone")
        a(f"s_branch {L_done}")
        a.label(L_redo)
        a("s_waitcnt vmcnt(0) lgkmcnt(0)")
        a.reset_counters()
        a("s_barrier")
        main_loop(a, "max")
        max_to_negm(a)
        main_loop(a, "safe")
        finish(a, None)
        a.vm = list(vm_state)
        a("s_waitcnt vmcnt(0)")
        a(f"s_branch {L_store}")
        a.label(L_done)


def kernel_attn(name):
    a = Asm()
    a.kname = name
    prologue(a)
    body_attn(a)
    a("s_waitcnt vmcnt(0)")
    stamp(a, 12)
    a("s_waitcnt vmcnt(0)")
    a.label("L_exit_" + name)
    a("s_endpgm")
    return kernel_header(name) + a.text(), kernel_desc(name, 512, 256)
```

```python
from common import *
import math

LOG2E = 1.4426950408889634
QSCALE = LOG2E / math.sqrt(20.0)
GC1 = -2.0 * math.sqrt(2.0 / math.pi) * LOG2E
GC2 = GC1 * 0.044715

SLOT = 36864
WOFF = 16384
LDS_EXTRA = 4 * SLOT

S_RB, S_CG, S_TH, S_CC = 46, 47, 48, 49
S_T0 = 50
S_WSTRIDE = 51
S_WCOL = 52
S_KX = 53
S_KW = 54
S_TMP = 55
S_W1 = 64
S_M2COL = 68
S_SCALE = 70
S_TYPEBASE = 72
S_C1, S_C2 = 74, 76
S_ONES = 78
S_MCOL = 79

V_L, V_T16, V_G = 1, 2, 3
V_XD = 4
V_WD = 8
V_X0, V_X1, V_WE, V_WO = 13, 14, 15, 16
V_XA0, V_XA1, V_WAE, V_WAO = 17, 18, 19, 20
V_T = 21
ACC = 32
WB = 112
XV = 152
ET = 216


def xfrag(tb, s):
    p = tb * 20 + s
    if p < 64:
        return f"a[{4 * p}:{4 * p + 3}]"
    return f"v[{XV + 4 * (p - 64)}:{XV + 4 * (p - 64) + 3}]"


def acc(b, tb, n=4, off=0):
    return vr(ACC + 16 * b + 4 * tb + off, n)


def setup(a):
    T = V_T
    a(f"s_and_b32 s{S_TMP}, s{S_WG}, 7")
    a(f"s_lshr_b32 s{S_TMP + 1}, s{S_WG}, 3")
    a(f"s_lshr_b32 s{S_RB}, s{S_TMP}, 2")
    a(f"s_lshl_b32 s{S_RB}, s{S_RB}, 3")
    a(f"s_and_b32 s{S_TMP + 2}, s{S_TMP + 1}, 7")
    a(f"s_add_u32 s{S_RB}, s{S_RB}, s{S_TMP + 2}")
    a(f"s_and_b32 s{S_CG}, s{S_TMP}, 3")
    a(f"s_lshl_b32 s{S_CG}, s{S_CG}, 2")
    a(f"s_lshr_b32 s{S_TMP + 2}, s{S_TMP + 1}, 3")
    a(f"s_add_u32 s{S_CG}, s{S_CG}, s{S_TMP + 2}")
    a(f"s_and_b32 s{S_TH}, s{S_WAVE}, 1")
    a(f"s_lshr_b32 s{S_CC}, s{S_WAVE}, 1")
    a(f"s_lshl_b32 s{S_T0}, s{S_RB}, 7")
    a(f"s_cmp_lt_u32 s{S_CG}, 12")
    a(f"s_movk_i32 s{S_WSTRIDE}, 3072")
    a(f"s_cselect_b32 s{S_WSTRIDE}, 3840, s{S_WSTRIDE}")
    a(f"s_cselect_b32 s{S_W1}, s{SRD_WQKV}, s{SRD_W1}")
    a(f"s_cselect_b32 s{S_W1 + 1}, s{SRD_WQKV + 1}, s{SRD_W1 + 1}")
    a(f"s_cselect_b32 s{S_W1 + 2}, s{SRD_WQKV + 2}, s{SRD_W1 + 2}")
    a(f"s_mov_b32 s{S_W1 + 3}, 0x00020000")
    a(f"s_mul_i32 s{S_TMP}, s{S_CG}, 160")
    a(f"s_sub_u32 s{S_TMP + 1}, s{S_CG}, 12")
    a(f"s_mul_i32 s{S_TMP + 1}, s{S_TMP + 1}, 192")
    a(f"s_add_u32 s{S_TMP + 1}, s{S_TMP + 1}, 768")
    a(f"s_cmp_lt_u32 s{S_CG}, 12")
    a(f"s_cselect_b32 s{S_WCOL}, s{S_TMP}, s{S_TMP + 1}")
    a(f"s_lshl_b32 s{S_TMP}, s{S_CG}, 6")
    a(f"s_add_u32 s{S_TMP + 1}, s{S_TMP + 1}, 160")
    a(f"s_cmp_lt_u32 s{S_CG}, 12")
    a(f"s_cselect_b32 s{S_M2COL}, s{S_TMP}, s{S_TMP + 1}")
    a(f"v_and_b32 v{V_L}, 63, v0")
    a(f"v_and_b32 v{V_T16}, 15, v0")
    a(f"v_lshrrev_b32 v{V_G}, 4, v{V_L}")
    a(f"s_lshl_b32 s{S_TMP}, s{S_WAVE}, 5")
    a(f"s_add_u32 s{S_TMP}, s{S_TMP}, s{S_T0}")
    a(f"v_lshrrev_b32 v{T}, 3, v{V_L}")
    a(f"v_add_u32 v{T}, s{S_TMP}, v{T}")
    a(f"s_movk_i32 s{S_TMP + 1}, 1280")
    a(f"v_mul_lo_u32 v{T}, v{T}, s{S_TMP + 1}")
    a(f"v_and_b32 v{T + 1}, 7, v{V_L}")
    a(f"v_xor_b32 v{T + 1}, v{T + 1}, v{V_G}")
    a(f"v_lshlrev_b32 v{T + 2}, 4, v{T + 1}")
    a(f"v_xor_b32 v{T + 3}, 64, v{T + 2}")
    for n in range(4):
        a(f"v_add_u32 v{V_XD + n}, v{T}, v{T + 2 + (n & 1)}")
        if n:
            a(f"v_add_u32 v{V_XD + n}, {n * (8 * 1280 - 1024)}, v{V_XD + n}")
    a(f"s_mul_i32 s{S_TMP}, s{S_WAVE}, 320")
    for n in range(5):
        a(f"v_add_u32 v{T}, s{S_TMP}, v{V_L}")
        if n:
            a(f"v_add_u32 v{T}, {64 * n}, v{T}")
        a(f"v_mul_u32_u24 v{T + 1}, 3277, v{T}")
        a(f"v_lshrrev_b32 v{T + 1}, 16, v{T + 1}")
        a(f"v_mul_u32_u24 v{T + 2}, 20, v{T + 1}")
        a(f"v_sub_u32 v{T + 2}, v{T}, v{T + 2}")
        a(f"v_bfe_u32 v{T + 3}, v{T + 1}, 3, 1")
        a(f"v_lshlrev_b32 v{T + 3}, 1, v{T + 3}")
        a(f"v_xor_b32 v{T + 2}, v{T + 2}, v{T + 3}")
        a(f"v_lshlrev_b32 v{T + 2}, 4, v{T + 2}")
        a(f"v_mul_lo_u32 v{T + 1}, v{T + 1}, s{S_WSTRIDE}")
        a(f"v_add_u32 v{V_WD + n}, v{T + 1}, v{T + 2}")
        if 0 < n < 4:
            a(f"v_subrev_u32 v{V_WD + n}, {1024 * n}, v{V_WD + n}")
    a(f"s_lshl_b32 s{S_KW}, s{S_WCOL}, 1")
    a(f"s_mov_b32 s{S_KX}, 0")
    a(f"s_lshl_b32 s{S_TMP}, s{S_TH}, 6")
    a(f"v_add_u32 v{T}, s{S_TMP}, v{V_T16}")
    a(f"v_lshlrev_b32 v{T}, 7, v{T}")
    a(f"v_lshrrev_b32 v{T + 1}, 1, v{V_T16}")
    a(f"v_xor_b32 v{T + 1}, v{T + 1}, v{V_G}")
    a(f"v_lshl_add_u32 v{V_X0}, v{T + 1}, 4, v{T}")
    a(f"v_xor_b32 v{V_X1}, 64, v{V_X0}")
    a(f"v_lshrrev_b32 v{T}, 2, v{V_T16}")
    a(f"v_lshl_add_u32 v{T}, v{V_G}, 3, v{T}")
    a(f"v_mul_u32_u24 v{T}, 320, v{T}")
    a(f"v_and_b32 v{T + 1}, 3, v{V_T16}")
    a(f"v_lshl_add_u32 v{T}, v{T + 1}, 3, v{T}")
    a(f"s_mul_i32 s{S_TMP}, s{S_CC}, 160")
    a(f"s_add_u32 s{S_TMP}, s{S_TMP}, {WOFF}")
    a(f"v_add_u32 v{T}, s{S_TMP}, v{T}")
    a(f"v_and_b32 v{T + 1}, 1, v{V_G}")
    a(f"v_lshlrev_b32 v{T + 1}, 5, v{T + 1}")
    a(f"v_add_u32 v{T + 2}, v{T}, v{T + 1}")
    a(f"v_sub_u32 v{T + 3}, v{T}, v{T + 1}")
    a(f"s_cmp_eq_u32 s{S_CC}, 0")
    a(f"s_cselect_b64 vcc, -1, 0")
    a(f"v_cndmask_b32 v{V_WE}, v{T + 3}, v{T + 2}, vcc")
    a(f"v_cndmask_b32 v{V_WO}, v{T + 2}, v{T + 3}, vcc")
    a(f"s_mov_b32 s{S_ONES}, 0x3f803f80")


def dma_chunk_list(c):
    slot = (c % 4) * SLOT
    L = []
    for n in range(4):
        pre = None
        if n == 0:
            pre = [f"s_lshl_b32 s{S_TMP}, s{S_WAVE}, 12", f"s_add_u32 m0, s{S_TMP}, {slot}", f"s_mov_b32 s{S_TMP + 1}, {128 * c}"]
        L.append((pre, f"buffer_load_dwordx4 v{V_XD + n}, {srd(SRD_X)}, s{S_TMP + 1} offen offset:{1024 * n} lds"))
    for n in range(5):
        pre = None
        if n == 0:
            pre = [f"s_mul_i32 s{S_TMP + 2}, s{S_WAVE}, 5120", f"s_add_u32 m0, s{S_TMP + 2}, {slot + WOFF}",
                   f"s_mul_i32 s{S_TMP + 3}, s{S_WSTRIDE}, {64 * c}", f"s_add_u32 s{S_TMP + 3}, s{S_TMP + 3}, s{S_KW}"]
        if n == 4:
            pre = [f"s_add_u32 m0, s{S_TMP + 2}, {slot + WOFF + 4096}", "s_nop 0"]
        off = 1024 * n if n < 4 else 0
        L.append((pre, f"buffer_load_dwordx4 v{V_WD + n}, {srd(S_W1)}, s{S_TMP + 3} offen offset:{off} lds"))
    return L


V_MD = 21
V_MR = 25
V_MA = 27


def m2_setup(a, nb):
    T = ET
    rowb = 64 * nb
    if nb == 2:
        a(f"v_lshrrev_b32 v{T}, 3, v{V_L}")
        a(f"v_bfe_u32 v{T + 1}, v{V_L}, 4, 1")
        a(f"v_lshlrev_b32 v{T + 1}, 1, v{T + 1}")
        a(f"v_and_b32 v{T + 2}, 7, v{V_L}")
        a(f"v_xor_b32 v{T + 2}, v{T + 2}, v{T + 1}")
        a(f"v_lshlrev_b32 v{T + 2}, 4, v{T + 2}")
        a(f"v_xor_b32 v{T + 3}, 64, v{T + 2}")
        a(f"v_mul_u32_u24 v{T}, 3072, v{T}")
        for n in range(4):
            a(f"v_add_u32 v{V_MD + n}, v{T}, v{T + 2 + (n & 1)}")
            if n:
                a(f"v_add_u32 v{V_MD + n}, {n * (8 * 3072 - 1024)}, v{V_MD + n}")
        a(f"v_lshrrev_b32 v{T}, 2, v{V_T16}")
        a(f"v_lshl_add_u32 v{T}, v{V_G}, 3, v{T}")
        a(f"v_lshlrev_b32 v{T}, 7, v{T}")
        a(f"v_and_b32 v{T + 1}, 3, v{V_T16}")
        a(f"v_lshl_add_u32 v{T}, v{T + 1}, 3, v{T}")
        a(f"v_bfe_u32 v{T + 1}, v{V_T16}, 3, 1")
        a(f"v_and_b32 v{T + 2}, 1, v{V_G}")
        a(f"v_lshl_or_b32 v{T + 1}, v{T + 2}, 1, v{T + 1}")
        a(f"s_lshl_b32 s{S_TMP}, s{S_CC}, 1")
        for b in range(2):
            a(f"s_add_u32 s{S_TMP + 1}, s{S_TMP}, {b}")
            a(f"v_xor_b32 v{T + 2}, s{S_TMP + 1}, v{T + 1}")
            a(f"v_lshl_add_u32 v{V_MR + b}, v{T + 2}, 5, v{T}")
    else:
        a(f"v_lshrrev_b32 v{T}, 2, v{V_L}")
        a(f"v_lshrrev_b32 v{T + 1}, 5, v{V_L}")
        a(f"v_lshlrev_b32 v{T + 1}, 1, v{T + 1}")
        a(f"v_and_b32 v{T + 2}, 3, v{V_L}")
        a(f"v_xor_b32 v{T + 2}, v{T + 2}, v{T + 1}")
        a(f"v_lshlrev_b32 v{T + 2}, 4, v{T + 2}")
        a(f"v_mul_u32_u24 v{T}, 3072, v{T}")
        a(f"v_add_u32 v{V_MD}, v{T}, v{T + 2}")
        for n in range(1, 4):
            a(f"v_add_u32 v{V_MD + n}, {n * (16 * 3072 - 1024)}, v{V_MD}")
        a(f"v_lshrrev_b32 v{T}, 2, v{V_T16}")
        a(f"v_lshl_add_u32 v{T}, v{V_G}, 3, v{T}")
        a(f"v_lshlrev_b32 v{T}, 6, v{T}")
        a(f"v_and_b32 v{T + 1}, 3, v{V_T16}")
        a(f"v_lshl_add_u32 v{T}, v{T + 1}, 3, v{T}")
        a(f"v_and_b32 v{T + 2}, 1, v{V_G}")
        a(f"v_xor_b32 v{T + 2}, s{S_CC}, v{T + 2}")
        a(f"v_lshl_add_u32 v{V_MR}, v{T + 2}, 5, v{T}")


def m2_layout(nb):
    if nb == 2:
        return [(2, 0, 256), (3, 256, 256), (0, 512, 128)]
    return [(2, 0, 512), (3, 512, 128)]


def m2_dma_list(nb, vi):
    slot, k0, nrows = m2_layout(nb)[vi]
    rowb = 64 * nb
    nins = nrows * rowb // 1024
    per = nins // 4
    rows_per_ins = 1024 // rowb
    L = []
    for n in range(per):
        pre = None
        if n % 4 == 0:
            pre = [f"s_mul_i32 s{S_TMP}, s{S_WAVE}, {per * 1024}",
                   f"s_add_u32 m0, s{S_TMP}, {slot * SLOT + 1024 * n}",
                   f"s_mul_i32 s{S_TMP + 1}, s{S_WAVE}, {per * rows_per_ins * 3072}",
                   f"s_lshl_b32 s{S_TMP + 2}, s{S_M2COL}, 1",
                   f"s_add_u32 s{S_TMP + 1}, s{S_TMP + 1}, s{S_TMP + 2}",
                   f"s_add_u32 s{S_TMP + 1}, s{S_TMP + 1}, {(k0 + n * rows_per_ins) * 3072}"]
        nn = n % 4
        if per % 2 == 1 or (nb == 2 and (per * 1) % 2 == 1):
            raise AssertionError("parity")
        L.append((pre, f"buffer_load_dwordx4 v{V_MD + nn}, {srd(SRD_W1)}, s{S_TMP + 1} offen offset:{1024 * nn} lds"))
    return L


def emit_dma(a, item, tag):
    pre, ins = item
    if pre:
        for p in pre:
            a(p)
    a.vmem(ins, tag)


def first_pass(a, orient, do_cs, nb2):
    for c in range(4):
        for it in dma_chunk_list(c):
            emit_dma(a, it, ("dma", c))

    def reads(s):
        c, sl = s // 2, s % 2
        R = []
        wb = WB + 20 * (s % 2)
        for b in range(5):
            base = V_WAE if b % 2 == 0 else V_WAO
            for rd in range(2):
                R.append(f"ds_read_b64_tr_b16 v[{wb + 4 * b + 2 * rd}:{wb + 4 * b + 2 * rd + 1}], v{base} offset:{10240 * sl + 1280 * rd + 32 * b}")
        for tb in range(4):
            R.append(f"ds_read_b128 {xfrag(tb, s)}, v{V_XA1 if sl else V_XA0} offset:{2048 * tb}")
        return R

    def set_slot(c):
        slot = (c % 4) * SLOT
        a(f"v_add_u32 v{V_XA0}, {slot}, v{V_X0}")
        a(f"v_add_u32 v{V_XA1}, {slot}, v{V_X1}")
        a(f"v_add_u32 v{V_WAE}, {slot}, v{V_WE}")
        a(f"v_add_u32 v{V_WAO}, {slot}, v{V_WO}")

    for i in range(80):
        a(f"v_mov_b32 v{ACC + i}, 0")
    if do_cs:
        for b in range(5):
            a(f"v_mov_b32 v{V_CS + b}, 0")
    a.wait_vm(("dma", 0))
    a("s_barrier")
    set_slot(0)
    for r in reads(0):
        a.lds(r, ("rd", 0))
    for s in range(20):
        pend_dma = []
        a.wait_lg(("rd", s))
        if s % 2 == 1 and s < 19:
            c = (s + 1) // 2
            a.wait_vm(("dma", c))
            a("s_barrier")
            set_slot(c)
            nxt = c + 3
            if nxt <= 9:
                pend_dma = [(it, ("dma", nxt)) for it in dma_chunk_list(nxt)]
            else:
                vi = nxt - 10
                if vi < len(m2_layout(nb2)):
                    pend_dma = [(it, ("m2", vi)) for it in m2_dma_list(nb2, vi)]
        R = reads(s + 1) if s < 19 else []
        wb = WB + 20 * (s % 2)
        m = 0
        for b in range(5):
            for tb in range(4):
                wf = f"v[{wb + 4 * b}:{wb + 4 * b + 3}]"
                if orient == "T":
                    a(f"v_mfma_f32_16x16x32_bf16 {acc(b, tb)}, {wf}, {xfrag(tb, s)}, {acc(b, tb)}")
                else:
                    a(f"v_mfma_f32_16x16x32_bf16 {acc(b, tb)}, {xfrag(tb, s)}, {wf}, {acc(b, tb)}")
                if m < len(R):
                    a.lds(R[m], ("rd", s + 1))
                elif pend_dma and (m >= 14 or m % 2 == 1):
                    it, tag = pend_dma.pop(0)
                    emit_dma(a, it, tag)
                m += 1
            if do_cs:
                pass
        while pend_dma:
            it, tag = pend_dma.pop(0)
            emit_dma(a, it, tag)
        if do_cs:
            lab = a.newlabel("cs")
            a(f"s_cmp_lg_u32 s{S_TH}, {s % 2}")
            a(f"s_cbranch_scc1 {lab}")
            for j in range(4):
                for b in range(5):
                    a(f"v_dot2_f32_bf16 v{V_CS + b}, v{wb + 4 * b + j}, s{S_ONES}, v{V_CS + b}")
            a.label(lab)


V_CS = ET + 32


def second_pass(a, nb):
    lay = m2_layout(nb)
    rowb = 64 * nb

    def where(s):
        k = 32 * s
        for vi, (slot, k0, nrows) in enumerate(lay):
            if k0 <= k < k0 + nrows:
                return vi, slot, (k - k0) * rowb
        raise AssertionError

    def reads(s):
        vi, slot, off = where(s)
        wb = WB + 8 * (s % 3)
        R = []
        for b in range(nb):
            for rd in range(2):
                R.append(f"ds_read_b64_tr_b16 v[{wb + 4 * b + 2 * rd}:{wb + 4 * b + 2 * rd + 1}], v{V_MA + b} offset:{off + rd * 4 * rowb}")
        return R

    cur_slot = [None]

    def set_slot(s):
        vi, slot, off = where(s)
        if cur_slot[0] != slot:
            cur_slot[0] = slot
            for b in range(nb):
                a(f"v_add_u32 v{V_MA + b}, {slot * SLOT}, v{V_MR + b}")

    for i in range(16 * nb):
        a(f"v_mov_b32 v{ACC + i}, 0")
    for b in range(nb):
        a(f"v_mov_b32 v{V_CS + b}, 0")
    a.wait_vm([("m2", vi) for vi in range(len(lay))])
    a("s_barrier")
    for s0 in range(2):
        set_slot(s0)
        for r in reads(s0):
            a.lds(r, ("rd2", s0))
    for s in range(20):
        a.wait_lg(("rd2", s))
        R = []
        if s + 2 < 20:
            set_slot(s + 2)
            R = reads(s + 2)
        wb = WB + 8 * (s % 3)
        m = 0
        for b in range(nb):
            for tb in range(4):
                a(f"v_mfma_f32_16x16x32_bf16 {vr(ACC + 16 * b + 4 * tb, 4)}, v[{wb + 4 * b}:{wb + 4 * b + 3}], {xfrag(tb, s)}, {vr(ACC + 16 * b + 4 * tb, 4)}")
                if m < len(R):
                    a.lds(R[m], ("rd2", s + 2))
                m += 1
        lab = a.newlabel("cs2")
        a(f"s_cmp_lg_u32 s{S_TH}, {s % 2}")
        a(f"s_cbranch_scc1 {lab}")
        for j in range(4):
            for b in range(nb):
                a(f"v_dot2_f32_bf16 v{V_CS + b}, v{wb + 4 * b + j}, s{S_ONES}, v{V_CS + b}")
        a.label(lab)


def epilogue_qk(a):
    T = ET
    a(f"s_cmp_lt_u32 s{S_CG}, 4")
    a(f"s_cselect_b32 s{S_SCALE}, {fhex(QSCALE)}, 1.0")
    a(f"s_mov_b32 s{S_SCALE + 1}, s{S_SCALE}")
    a(f"s_mov_b32 s{S_TYPEBASE}, {WS_KLO}")
    a(f"s_cselect_b32 s{S_TYPEBASE}, {WS_QLO}, s{S_TYPEBASE}")
    a(f"s_and_b32 s{S_TMP}, s{S_CG}, 3")
    a(f"s_lshl_b32 s{S_TMP}, s{S_TMP}, 2")
    a(f"s_lshl_b32 s{S_TMP + 1}, s{S_CC}, 1")
    a(f"s_add_u32 s{S_TMP}, s{S_TMP}, s{S_TMP + 1}")
    a(f"s_lshl_b32 s{S_TMP + 1}, s{S_RB}, 2")
    a(f"s_lshl_b32 s{S_TMP + 2}, s{S_TH}, 1")
    a(f"s_add_u32 s{S_TMP + 1}, s{S_TMP + 1}, s{S_TMP + 2}")
    a(f"v_and_b32 v{T}, 1, v{V_G}")
    a(f"v_lshl_add_u32 v{T}, v{T}, 4, v{V_T16}")
    a(f"v_lshlrev_b32 v{T}, 4, v{T}")
    a(f"v_cmp_le_u32 vcc, 2, v{V_G}")
    a("s_nop 4")

    def oct_addr(o, tau, dst):
        ip, oo = o // 5, o % 5
        if oo == 2:
            a(f"s_add_u32 s{dst}, s{S_TMP}, {ip}")
            a(f"s_lshl_b32 s{dst}, s{dst}, 15")
            a(f"s_add_u32 s{S_TMP + 6}, s{S_TMP + 1}, {tau}")
            a(f"s_lshl_b32 s{S_TMP + 6}, s{S_TMP + 6}, 9")
            a(f"s_add_u32 s{dst}, s{dst}, s{S_TMP + 6}")
            a(f"s_add_u32 s{dst}, s{dst}, 0x200000")
        else:
            hsel = 0 if oo < 2 else 1
            half = oo if oo < 2 else oo - 3
            a(f"s_add_u32 s{dst}, s{S_TMP}, {ip}")
            a(f"s_lshl_b32 s{dst}, s{dst}, 1")
            a(f"s_add_u32 s{dst}, s{dst}, {hsel}")
            a(f"s_lshl_b32 s{dst}, s{dst}, 16")
            a(f"s_add_u32 s{S_TMP + 6}, s{S_TMP + 1}, {tau}")
            a(f"s_lshl_b32 s{S_TMP + 6}, s{S_TMP + 6}, 10")
            a(f"s_add_u32 s{dst}, s{dst}, s{S_TMP + 6}")
            if half:
                a(f"s_add_u32 s{dst}, s{dst}, 512")

    a("s_nop 7")
    k = 0
    for b in range(5):
        for tau in range(2):
            P = T + 4 + 8 * (k % 3)
            AD = P + 4
            k += 1
            for t2 in range(2):
                tb = 2 * tau + t2
                r = ACC + 16 * b + 4 * tb
                a(f"v_pk_mul_f32 v[{r}:{r + 1}], v[{r}:{r + 1}], {sp(S_SCALE)}")
                a(f"v_pk_mul_f32 v[{r + 2}:{r + 3}], v[{r + 2}:{r + 3}], {sp(S_SCALE)}")
                a(f"v_cvt_pk_bf16_f32 v{P + 2 * t2}, v{r}, v{r + 1}")
                a(f"v_cvt_pk_bf16_f32 v{P + 2 * t2 + 1}, v{r + 2}, v{r + 3}")
            oct_addr(2 * b, tau, S_TMP + 3)
            oct_addr(2 * b + 1, tau, S_TMP + 4)
            a(f"v_mov_b32 v{AD}, s{S_TMP + 3}")
            a(f"v_mov_b32 v{AD + 1}, s{S_TMP + 4}")
            a(f"v_permlane16_swap_b32 v{P}, v{P + 2}")
            a(f"v_permlane16_swap_b32 v{P + 1}, v{P + 3}")
            a(f"v_cndmask_b32 v{AD}, v{AD}, v{AD + 1}, vcc")
            a(f"v_add_u32 v{AD}, v{AD}, v{T}")
            a.vmem(f"buffer_store_dwordx4 v[{P}:{P + 3}], v{AD}, {srd(SRD_WS)}, s{S_TYPEBASE} offen sc1", "st1")


def epilogue_v(a):
    T = ET
    a(f"s_sub_u32 s{S_TMP}, s{S_CG}, 8")
    a(f"s_lshl_b32 s{S_TMP}, s{S_TMP}, 3")
    a(f"s_mul_i32 s{S_TMP}, s{S_TMP}, 81920")
    a(f"s_lshl_b32 s{S_TMP + 1}, s{S_RB}, 2")
    a(f"s_lshl_b32 s{S_TMP + 2}, s{S_TH}, 1")
    a(f"s_add_u32 s{S_TMP + 1}, s{S_TMP + 1}, s{S_TMP + 2}")
    a(f"s_mul_i32 s{S_TMP + 1}, s{S_TMP + 1}, 1280")
    a(f"s_add_u32 s{S_TMP}, s{S_TMP}, s{S_TMP + 1}")
    a(f"s_add_u32 s{S_TYPEBASE}, s{S_TMP}, {WS_V}")
    a(f"v_lshrrev_b32 v{T}, 1, v{V_G}")
    a(f"v_mul_u32_u24 v{T}, 640, v{T}")
    a(f"v_and_b32 v{T + 1}, 1, v{V_G}")
    a(f"v_mul_u32_u24 v{T + 1}, 320, v{T + 1}")
    a(f"v_add_u32 v{T}, v{T}, v{T + 1}")
    a(f"s_mul_i32 s{S_TMP + 2}, s{S_CC}, 80")
    a(f"s_mov_b32 s{S_TMP + 3}, 81920")
    a("s_nop 7")
    k = 0
    for b in range(5):
        AD = T + 2
        a(f"v_add_u32 v{AD}, s{S_TMP + 2}, v{V_T16}")
        if b:
            a(f"v_add_u32 v{AD}, {16 * b}, v{AD}")
        a(f"v_mul_u32_u24 v{AD + 1}, 3277, v{AD}")
        a(f"v_lshrrev_b32 v{AD + 1}, 16, v{AD + 1}")
        a(f"v_mul_u32_u24 v{AD + 2}, 20, v{AD + 1}")
        a(f"v_sub_u32 v{AD}, v{AD}, v{AD + 2}")
        a(f"v_lshlrev_b32 v{AD}, 4, v{AD}")
        a(f"v_mul_lo_u32 v{AD + 1}, v{AD + 1}, s{S_TMP + 3}")
        a(f"v_add3_u32 v{AD + 4 + b}, v{AD}, v{AD + 1}, v{T}")
    for b in range(5):
        for tau in range(2):
            P = T + 12 + 4 * (k % 4)
            k += 1
            for t2 in range(2):
                tb = 2 * tau + t2
                r = ACC + 16 * b + 4 * tb
                a(f"v_cvt_pk_bf16_f32 v{P + 2 * t2}, v{r}, v{r + 1}")
                a(f"v_cvt_pk_bf16_f32 v{P + 2 * t2 + 1}, v{r + 2}, v{r + 3}")
            a("s_nop 1")
            a(f"v_permlane32_swap_b32 v{P}, v{P + 2}")
            a(f"v_permlane32_swap_b32 v{P + 1}, v{P + 3}")
            a.vmem(f"buffer_store_dwordx4 v[{P}:{P + 3}], v{T + 6 + b}, {srd(SRD_WS)}, s{S_TYPEBASE} offen offset:{1280 * tau} sc1", "st1")


def epilogue_mlp(a, nb, x4):
    T = ET
    ST = WB
    B1 = WB + 16
    CSQ = WB + 28
    BQ = WB + 32
    a(f"s_lshl_b32 s{S_TMP}, s{S_TH}, 6")
    a(f"s_add_u32 s{S_TMP}, s{S_TMP}, s{S_T0}")
    a(f"v_add_u32 v{T}, s{S_TMP}, v{V_T16}")
    a(f"v_lshlrev_b32 v{T}, 4, v{T}")
    for tb in range(4):
        a.vmem(f"buffer_load_dwordx4 v[{ST + 4 * tb}:{ST + 4 * tb + 3}], v{T}, {srd(SRD_WS)}, 0 offen offset:{WS_STATS + 256 * tb} sc1", "stats")
    a(f"v_lshlrev_b32 v{T + 1}, 3, v{V_G}")
    a(f"s_lshl_b32 s{S_TMP + 1}, s{S_MCOL}, 1")
    a(f"v_add_u32 v{T + 1}, s{S_TMP + 1}, v{T + 1}")
    for b in range(nb):
        a.vmem(f"global_load_dwordx2 v[{B1 + 2 * b}:{B1 + 2 * b + 1}], v{T + 1}, {sp(S_B1)} offset:{32 * b}", "b1")
    a("s_nop 2")
    for b in range(nb):
        c = V_CS + b
        a(f"v_mov_b32 v{T + 2}, v{c}")
        a("s_nop 1")
        a(f"v_permlane32_swap_b32 v{T + 2}, v{c}")
        a(f"v_add_f32 v{c}, v{c}, v{T + 2}")
        a(f"v_mov_b32 v{T + 2}, v{c}")
        a("s_nop 1")
        a(f"v_permlane16_swap_b32 v{T + 2}, v{c}")
        a(f"v_add_f32 v{c}, v{c}, v{T + 2}")
    a(f"s_mul_i32 s{S_TMP}, s{S_WAVE}, 320")
    a(f"s_add_u32 s{S_TMP}, s{S_TMP}, {LDS_EXTRA}")
    a(f"v_lshl_add_u32 v{T + 2}, v{V_T16}, 2, s{S_TMP}")
    for b in range(nb):
        a.lds(f"ds_write_b32 v{T + 2}, v{V_CS + b} offset:{64 * b}", "csw")
    a.wait_lg()
    a("s_barrier")
    a(f"s_mul_i32 s{S_TMP}, s{S_CC}, 640")
    a(f"s_add_u32 s{S_TMP}, s{S_TMP}, {LDS_EXTRA}")
    a(f"v_lshl_add_u32 v{T + 2}, v{V_G}, 4, s{S_TMP}")
    VC1, VC2 = T + 28, T + 30
    a(f"v_mov_b32 v{VC1}, {fhex(GC1)}")
    a(f"v_mov_b32 v{VC1 + 1}, {fhex(GC1)}")
    a(f"v_mov_b32 v{VC2}, {fhex(GC2)}")
    a(f"v_mov_b32 v{VC2 + 1}, {fhex(GC2)}")
    a(f"s_mov_b32 s{S_C1}, 1.0")
    a(f"s_mov_b32 s{S_C1 + 1}, 1.0")
    a(f"s_lshr_b32 s{S_TMP + 1}, s{S_T0}, 4")
    a(f"s_lshl_b32 s{S_TMP + 2}, s{S_TH}, 2")
    a(f"s_add_u32 s{S_TMP + 1}, s{S_TMP + 1}, s{S_TMP + 2}")
    a(f"s_mul_i32 s{S_TMP + 1}, s{S_TMP + 1}, {48 * 1024}")
    a(f"s_add_u32 s{S_TYPEBASE}, s{S_TMP + 1}, {WS_H}")
    a(f"v_lshlrev_b32 v{T + 3}, 4, v{V_L}")
    a.wait_vm(["stats", "b1"])
    PK = T + 8
    G1, G2 = T + 24, T + 28
    for b in range(nb):
        a.lds(f"ds_read_b128 v[{CSQ}:{CSQ + 3}], v{T + 2} offset:{64 * b}", "csr")
        a.lds(f"ds_read_b128 v[{G1}:{G1 + 3}], v{T + 2} offset:{320 + 64 * b}", "csr")
        a(f"v_lshlrev_b32 v{BQ}, 16, v{B1 + 2 * b}")
        a(f"v_and_b32 v{BQ + 1}, 0xffff0000, v{B1 + 2 * b}")
        a(f"v_lshlrev_b32 v{BQ + 2}, 16, v{B1 + 2 * b + 1}")
        a(f"v_and_b32 v{BQ + 3}, 0xffff0000, v{B1 + 2 * b + 1}")
        a.wait_lg("csr")
        a(f"v_pk_add_f32 v[{CSQ}:{CSQ + 1}], v[{CSQ}:{CSQ + 1}], v[{G1}:{G1 + 1}]")
        a(f"v_pk_add_f32 v[{CSQ + 2}:{CSQ + 3}], v[{CSQ + 2}:{CSQ + 3}], v[{G1 + 2}:{G1 + 3}]")
        for tb in range(4):
            r = ACC + 16 * b + 4 * tb
            st = ST + 4 * tb
            for h2 in range(2):
                x = f"v[{r + 2 * h2}:{r + 2 * h2 + 1}]"
                g1 = f"v[{G1 + 2 * h2}:{G1 + 2 * h2 + 1}]"
                a(f"v_pk_fma_f32 {x}, v[{CSQ + 2 * h2}:{CSQ + 2 * h2 + 1}], v[{st}:{st + 1}], {x} op_sel_hi:[1,0,1] neg_lo:[1,0,0] neg_hi:[1,0,0]")
                a(f"v_pk_fma_f32 {x}, {x}, v[{st}:{st + 1}], v[{BQ + 2 * h2}:{BQ + 2 * h2 + 1}] op_sel:[0,1,0] op_sel_hi:[1,1,1]")
                a(f"v_pk_mul_f32 {g1}, {x}, {x}")
                a(f"v_pk_fma_f32 {g1}, {g1}, v[{VC2}:{VC2 + 1}], v[{VC1}:{VC1 + 1}]")
                a(f"v_pk_mul_f32 {g1}, {g1}, {x}")
            for i in range(4):
                a(f"v_exp_f32 v{G1 + i}, v{G1 + i}")
            for h2 in range(2):
                x = f"v[{r + 2 * h2}:{r + 2 * h2 + 1}]"
                a(f"v_pk_add_f32 v[{G1 + 2 * h2}:{G1 + 2 * h2 + 1}], v[{G1 + 2 * h2}:{G1 + 2 * h2 + 1}], {sp(S_C1)}")
                a(f"v_pk_mul_f32 {x}, {x}, v[{st + 2}:{st + 3}] op_sel:[0,1] op_sel_hi:[1,1]")
            for i in range(4):
                a(f"v_rcp_f32 v{G1 + i}, v{G1 + i}")
            a("s_nop 0")
            for h2 in range(2):
                x = f"v[{r + 2 * h2}:{r + 2 * h2 + 1}]"
                a(f"v_pk_mul_f32 {x}, {x}, v[{G1 + 2 * h2}:{G1 + 2 * h2 + 1}]")
            pk = PK + 4 * tb + (2 * (b % 2) if x4 else 0)
            a(f"v_cvt_pk_bf16_f32 v{pk}, v{r}, v{r + 1}")
            a(f"v_cvt_pk_bf16_f32 v{pk + 1}, v{r + 2}, v{r + 3}")
            if not x4:
                if tb == 0:
                    a(f"s_lshr_b32 s{S_TMP + 1}, s{S_MCOL}, 4")
                    a(f"s_add_u32 s{S_TMP + 1}, s{S_TMP + 1}, {b}")
                    a(f"s_and_b32 s{S_TMP + 2}, s{S_TMP + 1}, 1")
                    a(f"s_lshl_b32 s{S_TMP + 2}, s{S_TMP + 2}, 3")
                    a(f"s_lshr_b32 s{S_TMP + 1}, s{S_TMP + 1}, 1")
                    a(f"s_lshl_b32 s{S_TMP + 1}, s{S_TMP + 1}, 10")
                    a(f"s_add_u32 s{S_TMP + 1}, s{S_TMP + 1}, s{S_TMP + 2}")
                    a(f"s_add_u32 s{S_TMP + 1}, s{S_TMP + 1}, s{S_TYPEBASE}")
                a(f"s_add_u32 s{S_TMP + 3}, s{S_TMP + 1}, {tb * 48 * 1024}")
                a.vmem(f"buffer_store_dwordx2 v[{pk}:{pk + 1}], v{T + 3}, {srd(SRD_WS)}, s{S_TMP + 3} offen sc1", "st2")
            elif b == 1:
                if tb == 0:
                    a(f"s_lshr_b32 s{S_TMP + 1}, s{S_MCOL}, 5")
                    a(f"s_lshl_b32 s{S_TMP + 1}, s{S_TMP + 1}, 10")
                    a(f"s_add_u32 s{S_TMP + 1}, s{S_TMP + 1}, s{S_TYPEBASE}")
                a(f"s_add_u32 s{S_TMP + 3}, s{S_TMP + 1}, {tb * 48 * 1024}")
                a.vmem(f"buffer_store_dwordx4 v[{pk - 2}:{pk + 1}], v{T + 3}, {srd(SRD_WS)}, s{S_TMP + 3} offen sc1", "st2")


def body_p1(a):
    stamp(a, 0)
    setup(a)
    L_v, L_m, L_join, L_end = a.newlabel("p1v"), a.newlabel("p1m"), a.newlabel("p1join"), a.newlabel("p1end")
    a(f"s_cmp_ge_u32 s{S_CG}, 12")
    a(f"s_cbranch_scc1 {L_m}")
    m2_setup(a, 2)
    a(f"s_cmp_ge_u32 s{S_CG}, 8")
    a(f"s_cbranch_scc1 {L_v}")
    st = (list(a.vm), list(a.lg))
    first_pass(a, "T", False, 2)
    stamp(a, 1)
    epilogue_qk(a)
    st_qk = (list(a.vm), list(a.lg))
    a(f"s_branch {L_join}")
    a.label(L_v)
    a.vm, a.lg = list(st[0]), list(st[1])
    first_pass(a, "N", False, 2)
    stamp(a, 1)
    epilogue_v(a)
    assert a.vm == st_qk[0] and a.lg == st_qk[1], (a.vm, st_qk[0])
    a.label(L_join)
    stamp(a, 2)
    second_pass(a, 2)
    stamp(a, 3)
    a(f"s_lshl_b32 s{S_MCOL}, s{S_CC}, 5")
    a(f"s_add_u32 s{S_MCOL}, s{S_MCOL}, s{S_M2COL}")
    epilogue_mlp(a, 2, True)
    a(f"s_branch {L_end}")
    a.label(L_m)
    a.vm, a.lg = list(st[0]), list(st[1])
    m2_setup(a, 1)
    first_pass(a, "T", True, 1)
    stamp(a, 1)
    a(f"s_mul_i32 s{S_MCOL}, s{S_CC}, 80")
    a(f"s_add_u32 s{S_MCOL}, s{S_MCOL}, s{S_WCOL}")
    a("s_nop 7")
    epilogue_mlp(a, 5, False)
    a("s_barrier")
    stamp(a, 2)
    second_pass(a, 1)
    stamp(a, 3)
    a(f"s_lshl_b32 s{S_MCOL}, s{S_CC}, 4")
    a(f"s_add_u32 s{S_MCOL}, s{S_MCOL}, s{S_M2COL}")
    epilogue_mlp(a, 1, False)
    a.label(L_end)


def kernel_p1(name):
    a = Asm()
    a.kname = name
    prologue(a)
    body_p1(a)
    stamp(a, 4)
    a("s_waitcnt vmcnt(0)")
    stamp(a, 5)
    a("s_waitcnt vmcnt(0)")
    a.label("L_exit_" + name)
    a("s_endpgm")
    return kernel_header(name) + a.text(), kernel_desc(name, 512, 256)
```

```python
from common import *

NS = 5
STG = 5120
NK = 17

S_TB, S_FB = 46, 47
S_T = 54
S_AH, S_AO = 48, 49
S_WH, S_WOO = 50, 51
S_LB = 52

V_L, V_T16, V_G = 1, 2, 3
V_WD = 4
V_RB = 9
V_AL = 10
V_T = 11
ACC = 32
WB = 112
AB = 152
ET = 200


def setup(a):
    T = V_T
    a(f"s_and_b32 s{S_T}, s{S_WG}, 7")
    a(f"s_lshr_b32 s{S_T + 1}, s{S_WG}, 3")
    a(f"s_lshr_b32 s{S_TB}, s{S_T}, 1")
    a(f"s_lshl_b32 s{S_TB}, s{S_TB}, 3")
    a(f"s_and_b32 s{S_T + 2}, s{S_T + 1}, 7")
    a(f"s_add_u32 s{S_TB}, s{S_TB}, s{S_T + 2}")
    a(f"s_and_b32 s{S_FB}, s{S_T}, 1")
    a(f"s_lshl_b32 s{S_FB}, s{S_FB}, 2")
    a(f"s_lshr_b32 s{S_T + 2}, s{S_T + 1}, 3")
    a(f"s_add_u32 s{S_FB}, s{S_FB}, s{S_T + 2}")
    a(f"v_and_b32 v{V_L}, 63, v0")
    a(f"v_and_b32 v{V_T16}, 15, v0")
    a(f"v_lshrrev_b32 v{V_G}, 4, v{V_L}")
    a(f"v_lshlrev_b32 v{V_AL}, 4, v{V_L}")
    for q in range(5):
        a(f"v_add_u32 v{T}, {64 * q}, v{V_L}")
        a(f"v_mul_u32_u24 v{T + 1}, 6554, v{T}")
        a(f"v_lshrrev_b32 v{T + 1}, 16, v{T + 1}")
        a(f"v_mul_u32_u24 v{T + 2}, 10, v{T + 1}")
        a(f"v_sub_u32 v{T + 2}, v{T}, v{T + 2}")
        a(f"v_lshlrev_b32 v{T + 2}, 4, v{T + 2}")
        a(f"v_mul_u32_u24 v{T + 1}, 1280, v{T + 1}")
        a(f"v_add_u32 v{V_WD + q}, v{T + 1}, v{T + 2}")
        if 0 < q < 4:
            a(f"v_subrev_u32 v{V_WD + q}, {1024 * q}, v{V_WD + q}")
    a(f"s_mul_i32 s{S_LB}, s{S_WAVE}, {NS * STG}")
    a(f"v_lshrrev_b32 v{T}, 2, v{V_T16}")
    a(f"v_lshl_add_u32 v{T}, v{V_G}, 2, v{T}")
    a(f"v_mul_u32_u24 v{T}, 160, v{T}")
    a(f"v_and_b32 v{T + 1}, 3, v{V_T16}")
    a(f"v_lshl_add_u32 v{T}, v{T + 1}, 3, v{T}")
    a(f"v_add_u32 v{V_RB}, s{S_LB}, v{T}")
    a(f"s_mul_i32 s{S_AH}, s{S_TB}, {4 * 48}")
    a(f"s_mul_i32 s{S_T}, s{S_WAVE}, 12")
    a(f"s_add_u32 s{S_AH}, s{S_AH}, s{S_T}")
    a(f"s_lshl_b32 s{S_AH}, s{S_AH}, 10")
    a(f"s_add_u32 s{S_AH}, s{S_AH}, {WS_H}")
    a(f"s_mul_i32 s{S_AO}, s{S_TB}, {4 * 20}")
    a(f"s_mul_i32 s{S_T}, s{S_WAVE}, 5")
    a(f"s_add_u32 s{S_AO}, s{S_AO}, s{S_T}")
    a(f"s_lshl_b32 s{S_AO}, s{S_AO}, 10")
    a(f"s_add_u32 s{S_AO}, s{S_AO}, {WS_O}")
    a(f"s_mul_i32 s{S_T}, s{S_FB}, 160")
    a(f"s_mul_i32 s{S_WH}, s{S_WAVE}, {32 * 12 * 1280}")
    a(f"s_add_u32 s{S_WH}, s{S_WH}, s{S_T}")
    a(f"s_mul_i32 s{S_WOO}, s{S_WAVE}, {32 * 5 * 1280}")
    a(f"s_add_u32 s{S_WOO}, s{S_WOO}, s{S_T}")


def dma_w(i):
    st = (i % NS) * STG
    if i < 12:
        sr, base, k = SRD_W2, S_WH, i
    else:
        sr, base, k = SRD_WO, S_WOO, i - 12
    L = []
    for q in range(5):
        pre = []
        if q == 0:
            pre = [f"s_add_u32 m0, s{S_LB}, {st}", f"s_add_u32 s{S_T + 8}, s{base}, {k * 32 * 1280}"]
        if q == 4:
            pre = [f"s_add_u32 m0, s{S_LB}, {st + 4096}", "s_nop 0"]
        L.append((pre, f"buffer_load_dwordx4 v{V_WD + q}, {srd(sr)}, s{S_T + 8} offen offset:{1024 * q if q < 4 else 0} lds"))
    return L


def act_loads(i):
    ab = AB + 16 * (i % 3)
    L = []
    for u in range(4):
        if i < 12:
            pre = [f"s_add_u32 s{S_T + 9}, s{S_AH}, {(u * 48 + i) * 1024}"]
        else:
            pre = [f"s_add_u32 s{S_T + 9}, s{S_AO}, {(u * 20 + i - 12) * 1024}"]
        L.append((pre, f"buffer_load_dwordx4 v[{ab + 4 * u}:{ab + 4 * u + 3}], v{V_AL}, {srd(SRD_WS)}, s{S_T + 9} offen sc1"))
    return L


def wreads(i):
    wb = WB + 20 * (i % 2)
    st = (i % NS) * STG
    R = []
    for cb in range(5):
        for rd in range(2):
            R.append(f"ds_read_b64_tr_b16 v[{wb + 4 * cb + 2 * rd}:{wb + 4 * cb + 2 * rd + 1}], v{V_RB} offset:{st + 2560 * rd + 32 * cb}")
    return R


def emit(a, item, tag):
    pre, ins = item
    for p in pre:
        a(p)
    a.vmem(ins, tag)


def main(a, wait_o=None):
    for i in range(4):
        for it in dma_w(i):
            emit(a, it, ("w", i))
        if i < 2:
            for it in act_loads(i):
                emit(a, it, ("a", i))
    for i in range(80):
        a(f"v_mov_b32 v{ACC + i}, 0")
    a.wait_vm(("w", 0))
    for r in wreads(0):
        a.lds(r, ("r", 0))
    for i in range(NK):
        pend = []
        if i + 2 < NK:
            if i + 2 == 12 and wait_o is not None:
                wait_o(a)
            pend += [(it, ("a", i + 2)) for it in act_loads(i + 2)]
        if i + 4 < NK:
            pend += [(it, ("w", i + 4)) for it in dma_w(i + 4)]
        a.wait_lg(("r", i))
        R = []
        tags = [("a", i)]
        if i + 1 < NK:
            tags.append(("w", i + 1))
            R = wreads(i + 1)
        a.wait_vm(tags)
        wb = WB + 20 * (i % 2)
        ab = AB + 16 * (i % 3)
        m = 0
        for cb in range(5):
            for u in range(4):
                r = ACC + 16 * cb + 4 * u
                a(f"v_mfma_f32_16x16x32_bf16 v[{r}:{r + 3}], v[{wb + 4 * cb}:{wb + 4 * cb + 3}], v[{ab + 4 * u}:{ab + 4 * u + 3}], v[{r}:{r + 3}]")
                if m < len(R):
                    a.lds(R[m], ("r", i + 1))
                elif pend:
                    it, tag = pend.pop(0)
                    emit(a, it, tag)
                m += 1
        while pend:
            it, tag = pend.pop(0)
            emit(a, it, tag)


def epilogue(a):
    T = ET
    OMG, B2, AD, OA = T, T + 6, T + 16, T + 22
    a(f"s_lshl_b32 s{S_T}, s{S_TB}, 6")
    a(f"s_lshl_b32 s{S_T + 1}, s{S_WAVE}, 4")
    a(f"s_add_u32 s{S_T}, s{S_T}, s{S_T + 1}")
    a(f"s_mul_i32 s{S_T + 2}, s{S_FB}, 160")
    for m in range(5):
        t = T + 28
        a(f"v_add_u32 v{t}, {64 * m}, v{V_L}")
        a(f"v_mul_u32_u24 v{t + 1}, 3277, v{t}")
        a(f"v_lshrrev_b32 v{t + 1}, 16, v{t + 1}")
        a(f"v_mul_u32_u24 v{t + 2}, 20, v{t + 1}")
        a(f"v_sub_u32 v{t + 2}, v{t}, v{t + 2}")
        a(f"v_add_u32 v{t + 3}, s{S_T + 1}, v{t + 1}")
        a(f"v_mul_u32_u24 v{t + 3}, 320, v{t + 3}")
        a(f"v_lshl_add_u32 v{AD + m}, v{t + 2}, 4, v{t + 3}")
        a(f"v_add_u32 v{t + 1}, s{S_T}, v{t + 1}")
        a(f"v_lshlrev_b32 v{t + 3}, 4, v{t + 1}")
        a.vmem(f"buffer_load_dword v{OMG + m}, v{t + 3}, {srd(SRD_WS)}, 0 offen offset:{WS_STATS + 12} sc1", "e")
        a(f"v_lshlrev_b32 v{t + 2}, 3, v{t + 2}")
        a(f"v_add_u32 v{t + 2}, s{S_T + 2}, v{t + 2}")
        a.vmem(f"global_load_dwordx2 v[{B2 + 2 * m}:{B2 + 2 * m + 1}], v{t + 2}, {sp(S_B2)}", "e")
        a(f"v_mul_u32_u24 v{t + 1}, 1280, v{t + 1}")
        a(f"v_add_u32 v{OA + m}, v{t + 1}, v{t + 2}")
    a(f"s_mul_i32 s{S_T + 3}, s{S_WAVE}, 20480")
    a(f"v_mul_u32_u24 v{T + 28}, 320, v{V_T16}")
    a(f"v_lshl_add_u32 v{T + 28}, v{V_G}, 4, v{T + 28}")
    a(f"v_add_u32 v{T + 28}, s{S_T + 3}, v{T + 28}")
    a("s_waitcnt lgkmcnt(0)")
    a.lg = []
    a("s_barrier")
    for cb in range(5):
        for u in range(4):
            r = ACC + 16 * cb + 4 * u
            a.lds(f"ds_write_b128 v{T + 28}, v[{r}:{r + 3}] offset:{u * 16 * 320 + cb * 64}", "pw")
    a.wait_lg()
    a("s_barrier")
    SUM = ACC
    for m in range(5):
        for w in range(4):
            r = SUM + 16 * m + 4 * w
            a.lds(f"ds_read_b128 v[{r}:{r + 3}], v{AD + m} offset:{w * 20480}", ("s", m))
    a.wait_vm("e")
    for m in range(5):
        a.wait_lg(("s", m))
        r = SUM + 16 * m
        for h in range(2):
            a(f"v_pk_add_f32 v[{r + 2 * h}:{r + 2 * h + 1}], v[{r + 2 * h}:{r + 2 * h + 1}], v[{r + 4 + 2 * h}:{r + 5 + 2 * h}]")
            a(f"v_pk_add_f32 v[{r + 8 + 2 * h}:{r + 9 + 2 * h}], v[{r + 8 + 2 * h}:{r + 9 + 2 * h}], v[{r + 12 + 2 * h}:{r + 13 + 2 * h}]")
        b = B2 + 2 * m
        t = T + 28
        a(f"v_lshlrev_b32 v{t}, 16, v{b}")
        a(f"v_and_b32 v{t + 1}, 0xffff0000, v{b}")
        a(f"v_lshlrev_b32 v{t + 2}, 16, v{b + 1}")
        a(f"v_and_b32 v{t + 3}, 0xffff0000, v{b + 1}")
        for h in range(2):
            a(f"v_pk_add_f32 v[{r + 2 * h}:{r + 2 * h + 1}], v[{r + 2 * h}:{r + 2 * h + 1}], v[{r + 8 + 2 * h}:{r + 9 + 2 * h}]")
        for i in range(4):
            a(f"v_fmac_f32 v{r + i}, v{OMG + m}, v{t + i}")
        a(f"v_cvt_pk_bf16_f32 v{r + 4}, v{r}, v{r + 1}")
        a(f"v_cvt_pk_bf16_f32 v{r + 5}, v{r + 2}, v{r + 3}")
        a.vmem(f"buffer_store_dwordx2 v[{r + 4}:{r + 5}], v{OA + m}, {srd(SRD_OUT)}, 0 offen", "o")


def body_p4(a, wait_o=None, wait_h=None):
    stamp(a, 16)
    setup(a)
    if wait_h:
        wait_h(a)
    main(a, wait_o)
    stamp(a, 17)
    a("s_nop 7")
    epilogue(a)


def kernel_p4(name):
    a = Asm()
    a.kname = name
    prologue(a)
    body_p4(a)
    a("s_waitcnt vmcnt(0)")
    stamp(a, 18)
    a("s_waitcnt vmcnt(0)")
    a.label("L_exit_" + name)
    a("s_endpgm")
    return kernel_header(name) + a.text(), kernel_desc(name, 512, 256)
```

```python
from common import *
import math

LOG2E = 1.4426950408889634


def swz_reduce(a, regs, tmp):
    for m in (1, 2, 4, 8, 16):
        for r, t in zip(regs, tmp):
            a(f"ds_swizzle_b32 v{t}, v{r} offset:0x{(m << 10) | 0x1f:04x}")
        a("s_waitcnt lgkmcnt(0)")
        for r, t in zip(regs, tmp):
            a(f"v_add_f32 v{r}, v{r}, v{t}")


def stats_issue(a, base=160):
    X, G = base, base + 10
    VA, VG = base + 20, base + 21
    a(f"s_and_b32 s42, s{S_WG}, 7")
    a("s_lshl_b32 s42, s42, 8")
    a(f"s_lshr_b32 s43, s{S_WG}, 3")
    a("s_lshl_b32 s43, s43, 3")
    a("s_add_u32 s42, s42, s43")
    a(f"s_lshl_b32 s43, s{S_WAVE}, 1")
    a("s_add_u32 s42, s42, s43")
    a(f"v_and_b32 v{base + 22}, 63, v0")
    a(f"v_lshrrev_b32 v{base + 23}, 5, v{base + 22}")
    a(f"v_and_b32 v{base + 22}, 31, v{base + 22}")
    a(f"v_add_u32 v{base + 24}, s42, v{base + 23}")
    a("s_movk_i32 s43, 1280")
    a(f"v_mul_lo_u32 v{VA}, v{base + 24}, s43")
    a(f"v_lshlrev_b32 v{VG}, 3, v{base + 22}")
    a(f"v_add_u32 v{VA}, v{VA}, v{VG}")
    for i in range(5):
        a.vmem(f"buffer_load_dwordx2 v[{X + 2 * i}:{X + 2 * i + 1}], v{VA}, {srd(SRD_X)}, 0 offen offset:{256 * i}", "st_x")
    for i in range(5):
        a.vmem(f"global_load_dwordx2 v[{G + 2 * i}:{G + 2 * i + 1}], v{VG}, {sp(S_GATE)} offset:{256 * i}", "st_g")


def stats_compute(a, base=160, sc1=True):
    X, G = base, base + 10
    U, TOK = base + 22, base + 24
    SUM, GZ, VAR, T0, T1, T2 = base + 25, base + 26, base + 27, base + 28, base + 29, base + 30
    MEAN = base + 32
    assert base % 4 == 0
    a.wait_vm(["st_x", "st_g"])
    a("s_mov_b32 s43, 0x3f803f80")
    a(f"v_mov_b32 v{SUM}, 0")
    a(f"v_mov_b32 v{GZ}, 0")
    for i in range(10):
        a(f"v_dot2_f32_bf16 v{SUM}, v{X + i}, s43, v{SUM}")
        a(f"v_dot2_f32_bf16 v{GZ}, v{X + i}, v{G + i}, v{GZ}")
    a("s_nop 2")
    swz_reduce(a, [SUM, GZ], [T0, T1])
    a(f"v_mul_f32 v{MEAN}, {fhex(1.0 / D)}, v{SUM}")
    a(f"v_mov_b32 v{VAR}, 0")
    for i in range(10):
        a(f"v_lshlrev_b32 v{T0}, 16, v{X + i}")
        a(f"v_and_b32 v{T1}, 0xffff0000, v{X + i}")
        a(f"v_sub_f32 v{T0}, v{T0}, v{MEAN}")
        a(f"v_sub_f32 v{T1}, v{T1}, v{MEAN}")
        a(f"v_fmac_f32 v{VAR}, v{T0}, v{T0}")
        a(f"v_fmac_f32 v{VAR}, v{T1}, v{T1}")
    swz_reduce(a, [VAR], [T0])
    a(f"v_mov_b32 v{T1}, {fhex(1e-5)}")
    a(f"v_fmac_f32 v{T1}, {fhex(1.0 / D)}, v{VAR}")
    a(f"v_mul_f32 v{T2}, {fhex(-LOG2E)}, v{GZ}")
    a(f"v_rsq_f32 v{MEAN + 1}, v{T1}")
    a(f"v_exp_f32 v{T2}, v{T2}")
    a("s_nop 0")
    a(f"v_add_f32 v{T2}, 1.0, v{T2}")
    a(f"v_rcp_f32 v{MEAN + 2}, v{T2}")
    a("s_nop 0")
    a(f"v_sub_f32 v{MEAN + 3}, 1.0, v{MEAN + 2}")
    a(f"v_lshlrev_b32 v{T0}, 4, v{TOK}")
    a(f"v_cmp_eq_u32 vcc, 0, v{U}")
    a("s_and_saveexec_b64 s[44:45], vcc")
    a.vmem(f"buffer_store_dwordx4 v[{MEAN}:{MEAN + 3}], v{T0}, {srd(SRD_WS)}, 0 offen offset:{WS_STATS}" + (" sc1" if sc1 else ""), "st_out")
    a("s_mov_b64 exec, s[44:45]")


def kernel_stats(name):
    a = Asm()
    a.kname = name
    prologue(a)
    stats_issue(a)
    stats_compute(a)
    a("s_waitcnt vmcnt(0)")
    a.label("L_exit_" + name)
    a("s_endpgm")
    return kernel_header(name) + a.text(), kernel_desc(name, 256, 256)
```

```python
import sys, os
sys.path.insert(0, os.path.dirname(os.path.abspath(__file__)))
from common import *
from asmlib import check_hazards
import ph_stats, ph_p1, ph_attn, ph_p4

HEADER = open("gated_mix__softmax_full_mha__mixer_channel_mlp__prompt.s.ref").read().split("; Override launch")[0]

def build(kernels, launches):
    txt = HEADER
    for (k, g, b, l) in launches:
        txt += f"; @launch kernel={k} grid=({g},1,1) block=({b},1,1) lds={l}\n"
    txt += '.amdgcn_target "amdgcn-amd-amdhsa--gfx950"\n.text\n'
    for body, desc in kernels:
        check_hazards(body)
        txt += body
    txt += '.section .rodata,"a"\n'
    for body, desc in kernels:
        txt += ".p2align 6\n" + desc
    return txt

if __name__ == "__main__":
    import common
    if "--prof" in sys.argv:
        common.PROFILE_ON[0] = True
        sys.argv.remove("--prof")
    out = sys.argv[1] if len(sys.argv) > 1 else "out.s"
    ks = [ph_stats.kernel_stats("stats_kernel"), ph_p1.kernel_p1("p1_kernel"), ph_attn.kernel_attn("attn_kernel"), ph_p4.kernel_p4("p4_kernel")]
    ls = [("stats_kernel", 256, 256, 0), ("p1_kernel", 256, 256, 163840), ("attn_kernel", 256, 256, 163840), ("p4_kernel", 256, 256, 163840)]
    open(out, "w").write(build(ks, ls))
    print("wrote", out, os.path.getsize(out))
```

```python
from asmlib import Asm, vr

S, D, H, F = 2048, 640, 32, 1536

WS_STATS = 0x0
WS_FLAG = 0x10000
WS_QLO = 0x100000
WS_QHI = 0x300000
WS_KLO = 0x400000
WS_KHI = 0x600000
WS_V = 0x700000
WS_H = 0xA00000
WS_O = 0x1000000
WS_SIZE = 0x1400000

SRD_X, SRD_WQKV, SRD_WO, SRD_W1, SRD_W2, SRD_WS, SRD_OUT = 4, 8, 12, 16, 20, 24, 28
S_B1, S_B2, S_GATE, S_DBG = 32, 34, 36, 38
S_WAVE = 40
S_WG = 41


def srd(n):
    return f"s[{n}:{n + 3}]"


def sp(n):
    return f"s[{n}:{n + 1}]"


def prologue(a, nwg=256):
    a(f"s_cmp_ge_u32 s2, {nwg}")
    a("s_cbranch_scc1 L_exit_" + a.kname)
    a(f"s_load_dwordx2 {sp(SRD_X)}, s[0:1], 0")
    a(f"s_load_dwordx2 {sp(SRD_WQKV)}, s[0:1], 8")
    a(f"s_load_dwordx2 {sp(SRD_WO)}, s[0:1], 16")
    a(f"s_load_dwordx2 {sp(SRD_W1)}, s[0:1], 32")
    a(f"s_load_dwordx2 {sp(S_B1)}, s[0:1], 40")
    a(f"s_load_dwordx2 {sp(SRD_W2)}, s[0:1], 48")
    a(f"s_load_dwordx2 {sp(S_B2)}, s[0:1], 56")
    a(f"s_load_dwordx2 {sp(S_GATE)}, s[0:1], 64")
    a(f"s_load_dwordx2 {sp(SRD_OUT)}, s[0:1], 72")
    a(f"s_load_dwordx2 {sp(S_DBG)}, s[0:1], 80")
    a(f"s_load_dwordx2 {sp(SRD_WS)}, s[0:1], 88")
    a("v_lshrrev_b32 v1, 6, v0")
    a(f"s_mov_b32 s{S_WG}, s2")
    for r, sz in ((SRD_X, S * D * 2), (SRD_WQKV, D * 3 * D * 2), (SRD_WO, D * D * 2), (SRD_W1, D * F * 2),
                  (SRD_W2, F * D * 2), (SRD_WS, WS_SIZE), (SRD_OUT, S * D * 2)):
        a(f"s_mov_b32 s{r + 2}, {sz}")
        a(f"s_mov_b32 s{r + 3}, 0x00020000")
    a(f"v_readfirstlane_b32 s{S_WAVE}, v1")
    a("s_waitcnt lgkmcnt(0)")


def kernel_header(name):
    return f""".globl {name}
.p2align 8
.type {name},@function
{name}:
"""


def kernel_desc(name, vgpr, accum, sgpr=102):
    return f""".amdhsa_kernel {name}
  .amdhsa_next_free_vgpr {vgpr}
  .amdhsa_next_free_sgpr {sgpr}
  .amdhsa_accum_offset {accum}
  .amdhsa_group_segment_fixed_size 0
  .amdhsa_kernarg_size 96
  .amdhsa_user_sgpr_count 2
  .amdhsa_user_sgpr_kernarg_segment_ptr 1
  .amdhsa_system_sgpr_workgroup_id_x 1
  .amdhsa_float_denorm_mode_32 3
  .amdhsa_float_denorm_mode_16_64 3
.end_amdhsa_kernel
"""


def f32bits(x):
    import struct
    return struct.unpack("<I", struct.pack("<f", x))[0]


def fhex(x):
    return f"0x{f32bits(x):08x}"


WS_PROF = 0x1300000
PROFILE = False


def stamp(a, idx):
    if not PROFILE_ON[0]:
        return
    a("s_waitcnt lgkmcnt(0)")
    a("s_memtime s[90:91]")
    a("s_memrealtime s[92:93]")
    a("s_waitcnt lgkmcnt(0)")
    a.lg = []
    a(f"s_lshl_b32 s94, s{S_WG}, 2")
    a(f"s_add_u32 s94, s94, s{S_WAVE}")
    a("s_lshl_b32 s94, s94, 3")
    a(f"s_add_u32 s94, s94, {WS_PROF + idx * 8192}")
    a("v_mov_b32 v254, s90")
    a("v_mov_b32 v255, s92")
    a("s_mov_b64 s[96:97], exec")
    a("s_mov_b64 exec, 1")
    a(f"v_mov_b32 v253, 0")
    a(f"buffer_store_dwordx2 v[254:255], v253, {srd(SRD_WS)}, s94 offen")
    a("s_mov_b64 exec, s[96:97]")
    if a.vm is not None:
        a.vm.append("stamp")


PROFILE_ON = [False]

F1 = WS_FLAG
F2 = WS_FLAG + 1024
F3 = WS_FLAG + 2048
SPIN_MAX = 1 << 20
S_SPIN = 84
S_SAVE = 86


def poll(a, load, nlanes, expect, vt, err):
    L, Ld, Lt = a.newlabel("poll"), a.newlabel("polled"), a.newlabel("polltmo")
    a(f"s_mov_b64 {sp(S_SAVE)}, exec")
    m = (1 << nlanes) - 1
    a(f"s_mov_b32 exec_lo, {hex(m & 0xffffffff)}")
    a(f"s_mov_b32 exec_hi, {hex(m >> 32)}")
    a(f"s_mov_b32 s{S_SPIN}, {SPIN_MAX}")
    a.label(L)
    a(load)
    a("s_waitcnt vmcnt(0)")
    a(f"v_cmp_ne_u32 vcc, {expect}, v{vt}")
    a("s_cmp_eq_u64 vcc, 0")
    a(f"s_cbranch_scc1 {Ld}")
    a(f"s_sub_u32 s{S_SPIN}, s{S_SPIN}, 1")
    a(f"s_cmp_eq_u32 s{S_SPIN}, 0")
    a(f"s_cbranch_scc1 {Lt}")
    a("s_sleep 2")
    a(f"s_branch {L}")
    a.label(Lt)
    a(f"v_mov_b32 v{vt}, {err}")
    a(f"v_mov_b32 v{vt + 1}, 252")
    a(f"global_store_dword v{vt + 1}, v{vt}, {sp(S_DBG)}")
    a.label(Ld)
    a(f"s_mov_b64 exec, {sp(S_SAVE)}")
    a.vm = []


def set_flag(a, soff_reg, vt):
    L = a.newlabel("noflag")
    a(f"s_cmp_lg_u32 s{S_WAVE}, 0")
    a(f"s_cbranch_scc1 {L}")
    a(f"s_mov_b64 {sp(S_SAVE)}, exec")
    a("s_mov_b64 exec, 1")
    a(f"v_mov_b32 v{vt}, 0")
    a(f"v_mov_b32 v{vt + 1}, 1")
    a(f"buffer_store_dword v{vt + 1}, v{vt}, {srd(SRD_WS)}, s{soff_reg} offen sc1")
    a(f"s_mov_b64 exec, {sp(S_SAVE)}")
    a.label(L)
```

```python
from common import *
import ph_stats, ph_p1 as p1, ph_attn as at, ph_p4 as p4

KNAME = "gated_mix__softmax_full_mha__mixer_channel_mlp__prompt_kernel"
S_F1, S_F2, S_F3 = 98, 99, 100


def flag_offsets(a):
    t = 88
    a(f"s_and_b32 s{t}, s{S_WG}, 7")
    a(f"s_lshr_b32 s{t + 1}, s{S_WG}, 3")
    a(f"s_lshl_b32 s{S_F3}, s{t}, 2")
    a(f"s_lshr_b32 s{S_F1}, s{t + 1}, 3")
    a(f"s_add_u32 s{S_F3}, s{S_F3}, s{S_F1}")
    a(f"s_and_b32 s{S_F1}, s{t + 1}, 7")
    a(f"s_lshl_b32 s{S_F1}, s{S_F1}, 5")
    a(f"s_add_u32 s{S_F3}, s{S_F3}, s{S_F1}")
    a(f"s_lshl_b32 s{S_F3}, s{S_F3}, 2")
    a(f"s_add_u32 s{S_F3}, s{S_F3}, {F3}")
    a(f"s_lshl_b32 s{S_F1}, s{p1.S_CG}, 4")
    a(f"s_add_u32 s{S_F1}, s{S_F1}, s{p1.S_RB}")
    a(f"s_lshl_b32 s{S_F1}, s{S_F1}, 2")
    a(f"s_add_u32 s{S_F1}, s{S_F1}, {F1}")
    a(f"s_lshl_b32 s{S_F2}, s{p1.S_RB}, 4")
    a(f"s_add_u32 s{S_F2}, s{S_F2}, s{p1.S_CG}")
    a(f"s_lshl_b32 s{S_F2}, s{S_F2}, 2")
    a(f"s_add_u32 s{S_F2}, s{S_F2}, {F2}")


def zero_flags(a, vt):
    L = a.newlabel("nozero")
    a(f"s_cmp_lg_u32 s{S_WAVE}, 0")
    a(f"s_cbranch_scc1 {L}")
    a(f"s_mov_b64 {sp(S_SAVE)}, exec")
    a("s_mov_b64 exec, 1")
    a(f"v_mov_b32 v{vt}, 0")
    for s in (S_F1, S_F2, S_F3):
        a(f"buffer_store_dword v{vt}, v{vt}, {srd(SRD_WS)}, s{s} offen sc1")
    a(f"s_mov_b64 exec, {sp(S_SAVE)}")
    a.label(L)


def init_arrive(a, vt):
    L = a.newlabel("noarr")
    a(f"s_cmp_lg_u32 s{S_WAVE}, 0")
    a(f"s_cbranch_scc1 {L}")
    a(f"s_mov_b64 {sp(S_SAVE)}, exec")
    a("s_mov_b64 exec, 1")
    a(f"s_and_b32 s88, s{S_WG}, 3")
    a("s_lshl_b32 s88, s88, 6")
    a(f"v_mov_b32 v{vt}, s88")
    a(f"v_mov_b32 v{vt + 1}, 1")
    a(f"global_atomic_add v{vt}, v{vt + 1}, {sp(S_DBG)}")
    a(f"s_mov_b64 exec, {sp(S_SAVE)}")
    a.label(L)


def init_wait(a, vt):
    a(f"v_and_b32 v{vt + 2}, 3, v0")
    a(f"v_lshlrev_b32 v{vt + 2}, 6, v{vt + 2}")
    poll(a, f"global_load_dword v{vt}, v{vt + 2}, {sp(S_DBG)} sc1", 4, 64, vt, 0xE1)


def wait_qkv(a, vt):
    g = 88
    a(f"s_lshr_b32 s{g}, s{at.S_HEAD}, 3")
    a(f"v_and_b32 v{vt + 2}, 63, v0")
    a(f"v_subrev_u32 v{vt + 3}, 2, v{vt + 2}")
    a(f"s_add_u32 s{g + 1}, s{g}, 4")
    a(f"s_lshl_b32 s{g + 1}, s{g + 1}, 4")
    a(f"v_lshrrev_b32 v{vt + 4}, 4, v{vt + 3}")
    a(f"v_lshlrev_b32 v{vt + 4}, 6, v{vt + 4}")
    a(f"v_and_b32 v{vt + 3}, 15, v{vt + 3}")
    a(f"v_add3_u32 v{vt + 3}, v{vt + 3}, v{vt + 4}, s{g + 1}")
    a(f"s_lshl_b32 s{g + 1}, s{g}, 4")
    a(f"s_lshl_b32 s{g + 2}, s{at.S_QB}, 1")
    a(f"s_add_u32 s{g + 1}, s{g + 1}, s{g + 2}")
    a(f"v_add_u32 v{vt + 4}, s{g + 1}, v{vt + 2}")
    a(f"v_cmp_gt_u32 vcc, 2, v{vt + 2}")
    a("s_nop 1")
    a(f"v_cndmask_b32 v{vt + 3}, v{vt + 3}, v{vt + 4}, vcc")
    a(f"v_lshlrev_b32 v{vt + 2}, 2, v{vt + 3}")
    a(f"v_add_u32 v{vt + 2}, {F1}, v{vt + 2}")
    poll(a, f"buffer_load_dword v{vt}, v{vt + 2}, {srd(SRD_WS)}, 0 offen sc1", 34, 1, vt, 0xE2)


def wait_h(a, vt):
    a(f"s_lshr_b32 s88, s{p4.S_TB}, 1")
    a("s_lshl_b32 s88, s88, 6")
    a(f"s_add_u32 s88, s88, {F2}")
    a(f"v_and_b32 v{vt + 2}, 15, v0")
    a(f"v_lshlrev_b32 v{vt + 2}, 2, v{vt + 2}")
    a(f"v_add_u32 v{vt + 2}, s88, v{vt + 2}")
    poll(a, f"buffer_load_dword v{vt}, v{vt + 2}, {srd(SRD_WS)}, 0 offen sc1", 16, 1, vt, 0xE3)


def wait_o(a):
    vt = 240
    a(f"s_lshr_b32 s88, s{p4.S_TB}, 2")
    a("s_lshl_b32 s88, s88, 7")
    a(f"s_add_u32 s88, s88, {F3}")
    a(f"v_and_b32 v{vt + 2}, 31, v0")
    a(f"v_lshlrev_b32 v{vt + 2}, 2, v{vt + 2}")
    a(f"v_add_u32 v{vt + 2}, s88, v{vt + 2}")
    poll(a, f"buffer_load_dword v{vt}, v{vt + 2}, {srd(SRD_WS)}, 0 offen sc1", 32, 1, vt, 0xE4)


def kernel():
    a = Asm()
    a.kname = KNAME
    prologue(a)
    hooks = {}

    def h_start(a):
        ph_stats.stats_compute(a)
        zero_flags(a, 200)
    def h_chunk(a, c):
        if c == 4:
            init_arrive(a, 240)
    hooks["start"] = h_start
    hooks["chunk"] = h_chunk
    hooks["init_wait"] = lambda a: init_wait(a, 240)

    def h_qkv_done(a):
        set_flag(a, S_F1, 240)
    hooks["qkv_done"] = h_qkv_done

    ph_stats.stats_issue(a)
    p1.body_p1(a, hooks, lambda a: flag_offsets(a))
    stamp(a, 4)
    def a_ready(a):
        wait_qkv(a, 240)
    def a_first_barrier(a):
        set_flag(a, S_F2, 240)
    at.body_attn(a, True, a_ready, a_first_barrier)
    a("s_waitcnt vmcnt(0)")
    a.vm = []
    a("s_barrier")
    set_flag(a, S_F3, 240)
    stamp(a, 12)
    p4.body_p4(a, wait_o, lambda a: wait_h(a, 240))
    a("s_waitcnt vmcnt(0)")
    stamp(a, 18)
    a("s_waitcnt vmcnt(0)")
    a.label("L_exit_" + KNAME)
    a("s_endpgm")
    return kernel_header(KNAME) + a.text(), kernel_desc(KNAME, 512, 256)
```

```python
from common import *

TILE = 2688
BUF = 8 * TILE
XCH = 2 * BUF
XFLAG = XCH + 24576
XMAX = XFLAG + 64

S_HEAD, S_QB, S_QQ, S_KH = 46, 47, 48, 49
S_LK, S_LH, S_LV = 50, 51, 52
S_IT = 53
S_T = 54
S_LK0, S_LH0, S_LV0 = 64, 65, 66
S_EXEC = 68
S_MODE = 70
S_LO32 = 72

V_L = 1
V_KA, V_KH, V_VA = 2, 3, 4
G_K, G_H, G_V = 5, 6, 7
W_K, W_H, W_V = 8, 9, 10
V_TOK = 13
V_T = 14
Q = 20
KB = 44
VB = 56
SS = 72
PP = 104
STG = 120
NEGM = 144
TMP = 208


def qlo(q): return f"v[{Q + 6 * q}:{Q + 6 * q + 3}]"
def qhi(q): return f"v[{Q + 6 * q + 4}:{Q + 6 * q + 5}]"
def klo(t): return f"v[{KB + 6 * (t % 2)}:{KB + 6 * (t % 2) + 3}]"
def khi(t): return f"v[{KB + 6 * (t % 2) + 4}:{KB + 6 * (t % 2) + 5}]"
def vfr(t, f): return f"v[{VB + 8 * (t % 2) + 4 * f}:{VB + 8 * (t % 2) + 4 * f + 3}]"
def sreg(n): return SS + 16 * (n % 2)
def preg(n): return PP + 8 * (n % 2)
def oacc(q): return f"a[{16 * q}:{16 * q + 15}]"


def setup(a):
    T = V_T
    a(f"s_and_b32 s{S_T}, s{S_WG}, 7")
    a(f"s_lshr_b32 s{S_T + 1}, s{S_WG}, 3")
    a(f"s_lshl_b32 s{S_HEAD}, s{S_T}, 2")
    a(f"s_lshr_b32 s{S_T + 2}, s{S_T + 1}, 3")
    a(f"s_add_u32 s{S_HEAD}, s{S_HEAD}, s{S_T + 2}")
    a(f"s_and_b32 s{S_QB}, s{S_T + 1}, 7")
    a(f"s_and_b32 s{S_QQ}, s{S_WAVE}, 1")
    a(f"s_lshr_b32 s{S_KH}, s{S_WAVE}, 1")
    a(f"s_mov_b32 s{S_LO32}, -1")
    a(f"s_mov_b32 s{S_LO32 + 1}, 0")
    a(f"v_and_b32 v{V_L}, 63, v0")
    a(f"v_and_b32 v{V_TOK}, 31, v0")
    a(f"s_mul_i32 s{S_T}, s{S_KH}, {4 * TILE}")
    a(f"v_lshl_add_u32 v{V_KA}, v{V_L}, 4, s{S_T}")
    a(f"s_add_u32 s{S_T + 1}, s{S_T}, 1024")
    a(f"v_lshl_add_u32 v{V_KH}, v{V_TOK}, 3, s{S_T + 1}")
    a(f"v_lshrrev_b32 v{T}, 5, v{V_L}")
    a(f"v_mul_u32_u24 v{T + 1}, 352, v{T}")
    a(f"v_min_u32 v{T + 2}, 21, v{V_TOK}")
    a(f"v_lshl_add_u32 v{T + 1}, v{T + 2}, 4, v{T + 1}")
    a(f"s_add_u32 s{S_T + 1}, s{S_T}, 1280")
    a(f"v_add_u32 v{V_VA}, s{S_T + 1}, v{T + 1}")
    a(f"v_lshlrev_b32 v{G_K}, 4, v{V_L}")
    a(f"v_lshlrev_b32 v{G_H}, 4, v{V_TOK}")
    a(f"v_lshl_add_u32 v{G_H}, v{T}, 9, v{G_H}")
    a(f"s_and_b32 s{S_T + 1}, s{S_WAVE}, 1")
    a(f"s_mul_i32 s{S_T + 2}, s{S_T + 1}, 160")
    a(f"v_add_u32 v{T + 3}, s{S_T + 2}, v{V_L}")
    a(f"v_lshlrev_b32 v{G_V}, 4, v{T + 3}")
    a(f"s_lshl_b32 s{S_T + 2}, s{S_KH}, 5")
    a(f"s_lshl_b32 s{S_T + 3}, s{S_T + 1}, 1")
    a(f"s_add_u32 s{S_T + 3}, s{S_T + 3}, s{S_T + 2}")
    a(f"s_lshl_b32 s{S_LK0}, s{S_HEAD}, 16")
    a(f"s_lshl_b32 s{S_T + 4}, s{S_T + 3}, 10")
    a(f"s_add_u32 s{S_LK0}, s{S_LK0}, s{S_T + 4}")
    a(f"s_add_u32 s{S_LK0}, s{S_LK0}, {WS_KLO}")
    a(f"s_lshr_b32 s{S_LH0}, s{S_HEAD}, 1")
    a(f"s_lshl_b32 s{S_LH0}, s{S_LH0}, 15")
    a(f"s_lshl_b32 s{S_T + 4}, s{S_T + 3}, 9")
    a(f"s_add_u32 s{S_LH0}, s{S_LH0}, s{S_T + 4}")
    a(f"s_and_b32 s{S_T + 4}, s{S_HEAD}, 1")
    a(f"s_lshl_b32 s{S_T + 4}, s{S_T + 4}, 3")
    a(f"s_add_u32 s{S_LH0}, s{S_LH0}, s{S_T + 4}")
    a(f"s_add_u32 s{S_LH0}, s{S_LH0}, {WS_KHI}")
    a(f"s_mul_i32 s{S_LV0}, s{S_HEAD}, 81920")
    a(f"s_mul_i32 s{S_T + 4}, s{S_T + 2}, 1280")
    a(f"s_add_u32 s{S_LV0}, s{S_LV0}, s{S_T + 4}")
    a(f"s_add_u32 s{S_LV0}, s{S_LV0}, {WS_V}")
    a(f"s_mul_i32 s{S_T + 4}, s{S_WAVE}, {2 * TILE}")
    a(f"v_lshl_add_u32 v{W_K}, v{V_L}, 4, s{S_T + 4}")
    a(f"v_mul_u32_u24 v{T + 1}, {TILE}, v{T}")
    a(f"v_lshl_add_u32 v{T + 1}, v{V_TOK}, 3, v{T + 1}")
    a(f"s_add_u32 s{S_T + 4}, s{S_T + 4}, 1024")
    a(f"v_add_u32 v{W_H}, s{S_T + 4}, v{T + 1}")
    a(f"s_mul_i32 s{S_T + 4}, s{S_KH}, {4 * TILE}")
    a(f"s_add_u32 s{S_T + 4}, s{S_T + 4}, 1280")
    for m in range(3):
        a(f"v_add_u32 v{T}, {64 * m}, v{T + 3}")
        a(f"v_mul_u32_u24 v{T + 1}, 3277, v{T}")
        a(f"v_lshrrev_b32 v{T + 1}, 16, v{T + 1}")
        a(f"v_mul_u32_u24 v{T + 2}, 20, v{T + 1}")
        a(f"v_sub_u32 v{T}, v{T}, v{T + 2}")
        a(f"v_lshlrev_b32 v{T}, 4, v{T}")
        a(f"v_lshrrev_b32 v{T + 2}, 2, v{T + 1}")
        a(f"v_mul_u32_u24 v{T + 2}, {TILE}, v{T + 2}")
        a(f"v_add_u32 v{T}, v{T}, v{T + 2}")
        a(f"v_and_b32 v{T + 1}, 3, v{T + 1}")
        a(f"v_mul_u32_u24 v{T + 1}, 352, v{T + 1}")
        a(f"v_add3_u32 v{W_V + m}, v{T}, v{T + 1}, s{S_T + 4}")


def init_lds_consts(a):
    T = TMP
    a(f"v_lshrrev_b32 v{T}, 2, v{V_L}")
    a(f"v_mul_u32_u24 v{T}, {TILE}, v{T}")
    a(f"v_and_b32 v{T + 1}, 3, v{V_L}")
    a(f"v_mul_u32_u24 v{T + 1}, 352, v{T + 1}")
    a(f"v_add_u32 v{T}, v{T}, v{T + 1}")
    a(f"v_add_u32 v{T}, {1280 + 320}, v{T}")
    for i in range(4):
        a(f"v_mov_b32 v{T + 4 + i}, 0x3f803f80")
        a(f"v_mov_b32 v{T + 8 + i}, 0")
    a.lds(f"ds_write_b128 v{T}, v[{T + 4}:{T + 7}]", "ci")
    a.lds(f"ds_write_b128 v{T}, v[{T + 8}:{T + 11}] offset:16", "ci")


def load_q(a):
    T = TMP
    a(f"s_lshl_b32 s{S_T}, s{S_QB}, 3")
    a(f"s_lshl_b32 s{S_T + 1}, s{S_QQ}, 2")
    a(f"s_add_u32 s{S_T}, s{S_T}, s{S_T + 1}")
    a(f"s_lshl_b32 s{S_T + 1}, s{S_HEAD}, 16")
    a(f"s_lshl_b32 s{S_T + 2}, s{S_T}, 10")
    a(f"s_add_u32 s{S_T + 1}, s{S_T + 1}, s{S_T + 2}")
    a(f"s_add_u32 s{S_T + 1}, s{S_T + 1}, {WS_QLO}")
    a(f"s_lshr_b32 s{S_T + 2}, s{S_HEAD}, 1")
    a(f"s_lshl_b32 s{S_T + 2}, s{S_T + 2}, 15")
    a(f"s_lshl_b32 s{S_T + 3}, s{S_T}, 9")
    a(f"s_add_u32 s{S_T + 2}, s{S_T + 2}, s{S_T + 3}")
    a(f"s_and_b32 s{S_T + 3}, s{S_HEAD}, 1")
    a(f"s_lshl_b32 s{S_T + 3}, s{S_T + 3}, 3")
    a(f"s_add_u32 s{S_T + 2}, s{S_T + 2}, s{S_T + 3}")
    a(f"s_add_u32 s{S_T + 2}, s{S_T + 2}, {WS_QHI}")
    a(f"v_lshlrev_b32 v{T}, 4, v{V_TOK}")
    for qi in range(4):
        a(f"v_mov_b32 v{Q + 6 * qi + 4}, 0")
        a(f"v_mov_b32 v{Q + 6 * qi + 5}, 0")
    for qi in range(4):
        a.vmem(f"buffer_load_dwordx4 {qlo(qi)}, v{G_K}, {srd(SRD_WS)}, s{S_T + 1} offen offset:{1024 * qi} sc1", "q")
    a(f"s_mov_b64 exec, {sp(S_LO32)}")
    for qi in range(4):
        a.vmem(f"buffer_load_dwordx2 {qhi(qi)}, v{T}, {srd(SRD_WS)}, s{S_T + 2} offen offset:{512 * qi} sc1", "q")
    a("s_mov_b64 exec, -1")


def stage_loads(a):
    a.vmem(f"buffer_load_dwordx4 v[{STG}:{STG + 3}], v{G_K}, {srd(SRD_WS)}, s{S_LK} offen sc1", "stg")
    a.vmem(f"buffer_load_dwordx4 v[{STG + 4}:{STG + 7}], v{G_K}, {srd(SRD_WS)}, s{S_LK} offen offset:1024 sc1", "stg")
    a.vmem(f"buffer_load_dwordx2 v[{STG + 8}:{STG + 9}], v{G_H}, {srd(SRD_WS)}, s{S_LH} offen sc1", "stg")
    a.vmem(f"buffer_load_dwordx4 v[{STG + 10}:{STG + 13}], v{G_V}, {srd(SRD_WS)}, s{S_LV} offen sc1", "stg")
    a.vmem(f"buffer_load_dwordx4 v[{STG + 14}:{STG + 17}], v{G_V}, {srd(SRD_WS)}, s{S_LV} offen offset:1024 sc1", "stg")
    a(f"s_mov_b64 exec, {sp(S_LO32)}")
    a.vmem(f"buffer_load_dwordx4 v[{STG + 18}:{STG + 21}], v{G_V}, {srd(SRD_WS)}, s{S_LV} offen offset:2048 sc1", "stg")
    a("s_mov_b64 exec, -1")
    a(f"s_add_u32 s{S_LK}, s{S_LK}, 4096")
    a(f"s_add_u32 s{S_LH}, s{S_LH}, 2048")
    a(f"s_add_u32 s{S_LV}, s{S_LV}, 5120")


def stage_write_list(buf):
    o = buf * BUF
    return [
        [f"ds_write_b128 v{W_K}, v[{STG}:{STG + 3}] offset:{o}"],
        [f"ds_write_b128 v{W_K}, v[{STG + 4}:{STG + 7}] offset:{o + TILE}"],
        [f"ds_write_b64 v{W_H}, v[{STG + 8}:{STG + 9}] offset:{o}", f"ds_write_b128 v{W_V}, v[{STG + 10}:{STG + 13}] offset:{o}"],
        [f"ds_write_b128 v{W_V + 1}, v[{STG + 14}:{STG + 17}] offset:{o}"],
        [f"s_mov_b64 exec, {sp(S_LO32)}", f"ds_write_b128 v{W_V + 2}, v[{STG + 18}:{STG + 21}] offset:{o}", "s_mov_b64 exec, -1"],
    ]


def kreads(t):
    tt = t % 8
    o = (tt // 4) * BUF + (tt % 4) * TILE
    return [f"ds_read_b128 {klo(t)}, v{V_KA} offset:{o}", f"ds_read_b64 {khi(t)}, v{V_KH} offset:{o}"]


def vreads(t):
    tt = t % 8
    o = (tt // 4) * BUF + (tt % 4) * TILE
    return [f"ds_read_b128 {vfr(t, 0)}, v{V_VA} offset:{o}", f"ds_read_b128 {vfr(t, 1)}, v{V_VA} offset:{o + 704}"]


def s_mfmas(n, mode):
    t, q = n // 4, n % 4
    s = sreg(n)
    c = "0" if mode != "safe" else f"v[{NEGM + 16 * q}:{NEGM + 16 * q + 15}]"
    return [f"v_mfma_f32_32x32x16_bf16 v[{s}:{s + 15}], {klo(t)}, {qlo(q)}, {c}",
            f"v_mfma_f32_32x32x8_bf16 v[{s}:{s + 15}], {khi(t)}, {qhi(q)}, v[{s}:{s + 15}]"]


def pv_mfmas(n):
    t, q = (n // 4), n % 4
    p = preg(n)
    return [f"v_mfma_f32_32x32x16_bf16 {oacc(q)}, {vfr(t, 0)}, v[{p}:{p + 3}], {oacc(q)}",
            f"v_mfma_f32_32x32x16_bf16 {oacc(q)}, {vfr(t, 1)}, v[{p + 4}:{p + 7}], {oacc(q)}"]


EXP = set()


def main_loop(a, mode, first_barrier=None):
    pv = mode != "max"
    a(f"s_mov_b32 s{S_LK}, s{S_LK0}")
    a(f"s_mov_b32 s{S_LH}, s{S_LH0}")
    a(f"s_mov_b32 s{S_LV}, s{S_LV0}")
    stage_loads(a)
    if pv:
        for i in range(64):
            a(f"v_accvgpr_write_b32 a{i}, 0")
        for i in range(8):
            a(f"v_mov_b32 v{PP + 8 + i}, 0")
            a(f"v_mov_b32 v{VB + 8 + i}, 0")
    else:
        for q in range(4):
            a(f"v_mov_b32 v{NEGM + 16 * q}, 0xff800000")
    a.wait_vm()
    for grp in stage_write_list(0):
        for ins in grp:
            if ins.startswith("ds_"):
                a.lds(ins, "w")
            else:
                a(ins)
    stage_loads(a)
    a.vm = []
    a.wait_lg()
    a("s_barrier")
    if first_barrier:
        first_barrier(a)
    for r in kreads(0):
        a.lds(r, ("k", 0))
    a.wait_lg()
    for m in s_mfmas(0, mode):
        a(m)
    if pv:
        for r in vreads(0):
            a.lds(r, ("v", 0))
    a("s_nop 11")
    if mode == "fast":
        keep = list(a.lg)
        stamp(a, 10)
        a.lg = keep
    a(f"s_mov_b32 s{S_IT}, 0")
    start_state = list(a.lg)
    L = a.newlabel("att_" + mode)
    a(".p2align 6")
    a.label(L)
    for n in range(32):
        t, q = n // 4, n % 4
        ci, hs = n // 16, n % 16
        s = sreg(n)
        p = preg(n)
        sm = s_mfmas(n + 1, mode)
        pm = pv_mfmas(n - 1) if pv else []
        if q == 3:
            a.wait_lg(("k", t + 1))
        extra = {0: [], 1: [], 2: [], 3: []}
        if q == 0:
            kr = kreads(t + 1)
            extra[0].append((kr[0], ("k", t + 1)))
            extra[1].append((kr[1], ("k", t + 1)))
        if pv and q == 1:
            extra[2].append((vreads(t + 1)[0], ("v", t + 1)))
        if pv and q == 2:
            extra[2].append((vreads(t + 1)[1], ("v", t + 1)))
        if hs == 6 and "nowaitvm" not in EXP:
            a("s_waitcnt vmcnt(0)")
        wl = []
        if 6 <= hs <= 10 and "nowrite" not in EXP:
            wl = stage_write_list(1 - ci)[hs - 6]
        mf = [sm[0], sm[1]] + pm
        for g in range(4):
            if pv and g == 2 and q == 1:
                a.wait_lg(("v", t))
            if g < len(mf):
                a(mf[g])
            for ins, tag in extra[g]:
                a.lds(ins, tag)
            if g == 3 or (not pv and g == 1):
                for ins in wl:
                    a(ins)
                wl = []
            if pv:
                for j in range(4):
                    a(f"v_exp_f32 v{s + 4 * g + j}, v{s + 4 * g + j}")
                if g > 0:
                    for j in range(2):
                        a(f"v_cvt_pk_bf16_f32 v{p + 2 * (g - 1) + j}, v{s + 4 * (g - 1) + 2 * j}, v{s + 4 * (g - 1) + 2 * j + 1}")
            else:
                m = NEGM + 16 * q
                if g == 0:
                    a("s_nop 9")
                for j in range(2):
                    a(f"v_max3_f32 v{m}, v{s + 4 * g + 2 * j}, v{s + 4 * g + 2 * j + 1}, v{m}")
        if pv:
            for j in range(2):
                a(f"v_cvt_pk_bf16_f32 v{p + 6 + j}, v{s + 12 + 2 * j}, v{s + 12 + 2 * j + 1}")
        if hs == 11:
            keep = list(a.lg)
            a("s_waitcnt lgkmcnt(0)")
            if "nobar" not in EXP:
                a("s_barrier")
            a.lg = []
        if hs == 12 and "noload" not in EXP:
            lab = a.newlabel("noload")
            a(f"s_cmp_ge_u32 s{S_IT}, 3")
            a(f"s_cbranch_scc1 {lab}")
            stage_loads(a)
            a.vm = []
            a.label(lab)
    a(f"s_add_u32 s{S_IT}, s{S_IT}, 1")
    a(f"s_cmp_lt_u32 s{S_IT}, 4")
    a(f"s_cbranch_scc1 {L}")
    assert len(a.lg) == len(start_state), (a.lg, start_state)
    a.wait_lg()
    if pv:
        for m in pv_mfmas(31):
            a(m)


def finish(a, L_redo):
    T = TMP
    R = SS
    OWN = 72
    PAR = 144
    a(f"s_lshl_b32 s{S_T}, s{S_QB}, 3")
    a(f"s_lshl_b32 s{S_T + 1}, s{S_QQ}, 2")
    a(f"s_add_u32 s{S_T}, s{S_T}, s{S_T + 1}")
    a(f"s_lshl_b32 s{S_T + 1}, s{S_KH}, 1")
    a(f"s_add_u32 s{S_T}, s{S_T}, s{S_T + 1}")
    a(f"s_lshl_b32 s{S_T + 1}, s{S_T}, 9")
    a(f"v_lshlrev_b32 v{T}, 4, v{V_TOK}")
    for e in range(2):
        a.vmem(f"buffer_load_dword v{T + 2 + e}, v{T}, {srd(SRD_WS)}, s{S_T + 1} offen offset:{WS_STATS + 8 + 512 * e} sc1", "g")
    a("s_nop 7")
    a("s_nop 3")
    Lk1, Lj = a.newlabel("kh1"), a.newlabel("khj")
    a(f"s_cmp_eq_u32 s{S_KH}, 1")
    a(f"s_cbranch_scc1 {Lk1}")
    for kh in range(2):
        if kh == 1:
            a.label(Lk1)
        for e in range(2):
            for i in range(12):
                a(f"v_accvgpr_read_b32 v{OWN + 12 * e + i}, a{16 * (2 * kh + e) + i}")
                a(f"v_accvgpr_read_b32 v{PAR + 12 * e + i}, a{16 * (2 * (1 - kh) + e) + i}")
        if kh == 0:
            a(f"s_branch {Lj}")
    a.label(Lj)
    a(f"s_mul_i32 s{S_T + 2}, s{S_WAVE}, 6144")
    a(f"s_add_u32 s{S_T + 2}, s{S_T + 2}, {XCH}")
    a(f"v_lshl_add_u32 v{T + 1}, v{V_L}, 4, s{S_T + 2}")
    for i in range(6):
        a.lds(f"ds_write_b128 v{T + 1}, v[{PAR + 4 * i}:{PAR + 4 * i + 3}] offset:{1024 * i}", "x")
    a(f"s_xor_b32 s{S_T + 2}, s{S_WAVE}, 2")
    a(f"s_mul_i32 s{S_T + 2}, s{S_T + 2}, 6144")
    a(f"s_add_u32 s{S_T + 2}, s{S_T + 2}, {XCH}")
    a(f"v_lshl_add_u32 v{T + 1}, v{V_L}, 4, s{S_T + 2}")
    a.wait_lg()
    a("s_barrier")
    for i in range(6):
        a.lds(f"ds_read_b128 v[{PAR + 4 * i}:{PAR + 4 * i + 3}], v{T + 1} offset:{1024 * i}", "x")
    a.wait_lg()
    for i in range(0, 24, 2):
        a(f"v_pk_add_f32 v[{OWN + i}:{OWN + i + 1}], v[{OWN + i}:{OWN + i + 1}], v[{PAR + i}:{PAR + i + 1}]")
    LR = T + 4
    for e in range(2):
        a(f"v_mov_b32 v{T + 6}, v{OWN + 12 * e + 8}")
        a(f"v_mov_b32 v{LR + e}, v{OWN + 12 * e + 8}")
        a("s_nop 1")
        a(f"v_permlane32_swap_b32 v{T + 6}, v{LR + e}")
    if L_redo is not None:
        a(f"s_mov_b64 {sp(S_T + 4)}, 0")
        a(f"v_mov_b32 v{T + 8}, {fhex(2.0 ** -64)}")
        a(f"v_mov_b32 v{T + 9}, {fhex(2.0 ** 64)}")
        a(f"v_mov_b32 v{T + 10}, 0x207")
        for e in range(2):
            a(f"v_cmp_nge_f32 vcc, v{LR + e}, v{T + 8}")
            a(f"s_or_b64 {sp(S_T + 4)}, {sp(S_T + 4)}, vcc")
            a(f"v_cmp_nle_f32 vcc, v{LR + e}, v{T + 9}")
            a(f"s_or_b64 {sp(S_T + 4)}, {sp(S_T + 4)}, vcc")
            for i in range(8):
                a(f"v_cmp_class_f32 vcc, v{OWN + 12 * e + i}, v{T + 10}")
                a(f"s_or_b64 {sp(S_T + 4)}, {sp(S_T + 4)}, vcc")
            for i in range(8, 12):
                a(f"v_cmp_class_f32 vcc, v{OWN + 12 * e + i}, v{T + 10}")
                a(f"s_and_b64 vcc, vcc, {sp(S_LO32)}")
                a(f"s_or_b64 {sp(S_T + 4)}, {sp(S_T + 4)}, vcc")
        lab = a.newlabel("novote")
        a(f"s_cmp_eq_u64 {sp(S_T + 4)}, 0")
        a(f"s_cbranch_scc1 {lab}")
        a(f"v_mov_b32 v{T + 8}, {XFLAG}")
        a(f"v_mov_b32 v{T + 9}, 1")
        a(f"ds_write_b32 v{T + 8}, v{T + 9}")
        a.label(lab)
        a("s_waitcnt lgkmcnt(0)")
        a("s_barrier")
        a(f"v_mov_b32 v{T + 8}, {XFLAG}")
        a(f"ds_read_b32 v{T + 9}, v{T + 8}")
        a("s_waitcnt lgkmcnt(0)")
        a(f"v_readfirstlane_b32 s{S_T + 4}, v{T + 9}")
        a(f"s_cmp_lg_u32 s{S_T + 4}, 0")
        a(f"s_cbranch_scc1 {L_redo}")
    return T, OWN, LR


def store_o(a, T, OWN, LR):
    a.wait_vm("g")
    for e in range(2):
        a(f"v_rcp_f32 v{LR + e}, v{LR + e}")
    a("s_nop 0")
    for e in range(2):
        a(f"v_mul_f32 v{LR + e}, v{LR + e}, v{T + 2 + e}")
    a(f"v_lshrrev_b32 v{T + 8}, 4, v{V_TOK}")
    a(f"v_mul_u32_u24 v{T + 8}, 20480, v{T + 8}")
    a(f"v_and_b32 v{T + 9}, 15, v{V_TOK}")
    a(f"v_lshl_add_u32 v{T + 8}, v{T + 9}, 4, v{T + 8}")
    a(f"v_cmp_le_u32 vcc, 32, v{V_L}")
    a(f"s_mul_i32 s{S_T + 1}, s{S_T}, {2 * 20480}")
    a(f"s_add_u32 s{S_T + 1}, s{S_T + 1}, {WS_O}")
    a(f"s_mul_i32 s{S_T + 2}, s{S_HEAD}, 5")
    for m in range(3):
        for hh in range(2):
            d = S_T + 3 + hh
            a(f"s_add_u32 s{S_T + 5}, s{S_T + 2}, {2 * m + hh}")
            a(f"s_lshr_b32 s{d}, s{S_T + 5}, 3")
            a(f"s_lshl_b32 s{d}, s{d}, 10")
            a(f"s_and_b32 s{S_T + 6}, s{S_T + 5}, 3")
            a(f"s_lshl_b32 s{S_T + 6}, s{S_T + 6}, 8")
            a(f"s_add_u32 s{d}, s{d}, s{S_T + 6}")
            a(f"s_bfe_u32 s{S_T + 6}, s{S_T + 5}, 0x10002")
            a(f"s_lshl_b32 s{S_T + 6}, s{S_T + 6}, 3")
            a(f"s_add_u32 s{d}, s{d}, s{S_T + 6}")
        a(f"v_mov_b32 v{T + 10}, s{S_T + 3}")
        a(f"v_mov_b32 v{T + 11}, s{S_T + 4}")
        a(f"v_cndmask_b32 v{T + 10}, v{T + 10}, v{T + 11}, vcc")
        a(f"v_add_u32 v{T + 12 + m}, v{T + 10}, v{T + 8}")
    for e in range(2):
        for m in range(3):
            r = OWN + 12 * e + 4 * m
            P = T + 16 + 2 * ((3 * e + m) % 4)
            for i in range(4):
                a(f"v_mul_f32 v{r + i}, v{r + i}, v{LR + e}")
            a(f"v_cvt_pk_bf16_f32 v{P}, v{r}, v{r + 1}")
            a(f"v_cvt_pk_bf16_f32 v{P + 1}, v{r + 2}, v{r + 3}")
            if m == 2:
                a(f"s_mov_b64 exec, {sp(S_LO32)}")
            a(f"s_add_u32 s{S_T + 3}, s{S_T + 1}, {e * 2 * 20480}")
            a.vmem(f"buffer_store_dwordx2 v[{P}:{P + 1}], v{T + 12 + m}, {srd(SRD_WS)}, s{S_T + 3} offen sc1", "ost")
            if m == 2:
                a("s_mov_b64 exec, -1")


def max_to_negm(a):
    T = TMP
    for q in range(4):
        m = NEGM + 16 * q
        a(f"v_mov_b32 v{T}, v{m}")
        a("s_nop 1")
        a(f"v_permlane32_swap_b32 v{T}, v{m}")
        a(f"v_max_f32 v{m}, v{m}, v{T}")
    a(f"s_lshl_b32 s{S_T}, s{S_WAVE}, 10")
    a(f"s_add_u32 s{S_T}, s{S_T}, {XCH}")
    a(f"v_lshl_add_u32 v{T + 1}, v{V_L}, 2, s{S_T}")
    for q in range(4):
        a(f"ds_write_b32 v{T + 1}, v{NEGM + 16 * q} offset:{256 * q}")
    a(f"s_xor_b32 s{S_T}, s{S_WAVE}, 2")
    a(f"s_lshl_b32 s{S_T}, s{S_T}, 10")
    a(f"s_add_u32 s{S_T}, s{S_T}, {XCH}")
    a(f"v_lshl_add_u32 v{T + 1}, v{V_L}, 2, s{S_T}")
    a("s_waitcnt lgkmcnt(0)")
    a("s_barrier")
    for q in range(4):
        a(f"ds_read_b32 v{T + 2 + q}, v{T + 1} offset:{256 * q}")
    a("s_waitcnt lgkmcnt(0)")
    for q in range(4):
        m = NEGM + 16 * q
        a(f"v_max_f32 v{m}, v{m}, v{T + 2 + q}")
        a(f"v_sub_f32 v{m}, 0, v{m}")
        for i in range(1, 16):
            a(f"v_mov_b32 v{m + i}, v{m}")
    a("s_barrier")


def body_attn(a, with_fallback=True, ready=None, first_barrier=None):
    stamp(a, 8)
    setup(a)
    init_lds_consts(a)
    a(f"v_mov_b32 v{TMP + 12}, {XFLAG}")
    a(f"v_mov_b32 v{TMP + 13}, 0")
    a.lds(f"ds_write_b32 v{TMP + 12}, v{TMP + 13}", "ci")
    if ready:
        keep = list(a.lg)
        ready(a)
        a.lg = keep
    load_q(a)
    a.wait_vm("q")
    a.wait_lg()
    stamp(a, 9)
    main_loop(a, "fast", first_barrier)
    stamp(a, 11)
    L_redo = a.newlabel("redo") if with_fallback else None
    L_store = a.newlabel("ostore")
    T, OWN, LR = finish(a, L_redo)
    a.label(L_store)
    vm_state = list(a.vm)
    store_o(a, T, OWN, LR)
    if with_fallback:
        L_done = a.newlabel("attdone")
        a(f"s_branch {L_done}")
        a.label(L_redo)
        a("s_waitcnt vmcnt(0) lgkmcnt(0)")
        a.reset_counters()
        a("s_barrier")
        main_loop(a, "max")
        max_to_negm(a)
        main_loop(a, "safe")
        finish(a, None)
        a.vm = list(vm_state)
        a("s_waitcnt vmcnt(0)")
        a(f"s_branch {L_store}")
        a.label(L_done)


def kernel_attn(name):
    a = Asm()
    a.kname = name
    prologue(a)
    body_attn(a)
    a("s_waitcnt vmcnt(0)")
    stamp(a, 12)
    a("s_waitcnt vmcnt(0)")
    a.label("L_exit_" + name)
    a("s_endpgm")
    return kernel_header(name) + a.text(), kernel_desc(name, 512, 256)
```

```python
from common import *
import math

LOG2E = 1.4426950408889634
QSCALE = LOG2E / math.sqrt(20.0)
GC1 = -2.0 * math.sqrt(2.0 / math.pi) * LOG2E
GC2 = GC1 * 0.044715

SLOT = 36864
WOFF = 16384
LDS_EXTRA = 4 * SLOT

S_RB, S_CG, S_TH, S_CC = 46, 47, 48, 49
S_T0 = 50
S_WSTRIDE = 51
S_WCOL = 52
S_KX = 53
S_KW = 54
S_TMP = 55
S_W1 = 64
S_M2COL = 68
S_SCALE = 70
S_TYPEBASE = 72
S_C1, S_C2 = 74, 76
S_ONES = 78
S_MCOL = 79

V_L, V_T16, V_G = 1, 2, 3
V_XD = 4
V_WD = 8
V_X0, V_X1, V_WE, V_WO = 13, 14, 15, 16
V_XA0, V_XA1, V_WAE, V_WAO = 17, 18, 19, 20
V_T = 21
ACC = 32
WB = 112
XV = 152
ET = 216


def xfrag(tb, s):
    p = tb * 20 + s
    if p < 64:
        return f"a[{4 * p}:{4 * p + 3}]"
    return f"v[{XV + 4 * (p - 64)}:{XV + 4 * (p - 64) + 3}]"


def acc(b, tb, n=4, off=0):
    return vr(ACC + 16 * b + 4 * tb + off, n)


def setup(a):
    T = V_T
    a(f"s_and_b32 s{S_TMP}, s{S_WG}, 7")
    a(f"s_lshr_b32 s{S_TMP + 1}, s{S_WG}, 3")
    a(f"s_lshr_b32 s{S_RB}, s{S_TMP}, 2")
    a(f"s_lshl_b32 s{S_RB}, s{S_RB}, 3")
    a(f"s_and_b32 s{S_TMP + 2}, s{S_TMP + 1}, 7")
    a(f"s_add_u32 s{S_RB}, s{S_RB}, s{S_TMP + 2}")
    a(f"s_and_b32 s{S_CG}, s{S_TMP}, 3")
    a(f"s_lshl_b32 s{S_CG}, s{S_CG}, 2")
    a(f"s_lshr_b32 s{S_TMP + 2}, s{S_TMP + 1}, 3")
    a(f"s_add_u32 s{S_CG}, s{S_CG}, s{S_TMP + 2}")
    a(f"s_and_b32 s{S_TH}, s{S_WAVE}, 1")
    a(f"s_lshr_b32 s{S_CC}, s{S_WAVE}, 1")
    a(f"s_lshl_b32 s{S_T0}, s{S_RB}, 7")
    a(f"s_cmp_lt_u32 s{S_CG}, 12")
    a(f"s_movk_i32 s{S_WSTRIDE}, 3072")
    a(f"s_cselect_b32 s{S_WSTRIDE}, 3840, s{S_WSTRIDE}")
    a(f"s_cselect_b32 s{S_W1}, s{SRD_WQKV}, s{SRD_W1}")
    a(f"s_cselect_b32 s{S_W1 + 1}, s{SRD_WQKV + 1}, s{SRD_W1 + 1}")
    a(f"s_cselect_b32 s{S_W1 + 2}, s{SRD_WQKV + 2}, s{SRD_W1 + 2}")
    a(f"s_mov_b32 s{S_W1 + 3}, 0x00020000")
    a(f"s_mul_i32 s{S_TMP}, s{S_CG}, 160")
    a(f"s_sub_u32 s{S_TMP + 1}, s{S_CG}, 12")
    a(f"s_mul_i32 s{S_TMP + 1}, s{S_TMP + 1}, 192")
    a(f"s_add_u32 s{S_TMP + 1}, s{S_TMP + 1}, 768")
    a(f"s_cmp_lt_u32 s{S_CG}, 12")
    a(f"s_cselect_b32 s{S_WCOL}, s{S_TMP}, s{S_TMP + 1}")
    a(f"s_lshl_b32 s{S_TMP}, s{S_CG}, 6")
    a(f"s_add_u32 s{S_TMP + 1}, s{S_TMP + 1}, 160")
    a(f"s_cmp_lt_u32 s{S_CG}, 12")
    a(f"s_cselect_b32 s{S_M2COL}, s{S_TMP}, s{S_TMP + 1}")
    a(f"v_and_b32 v{V_L}, 63, v0")
    a(f"v_and_b32 v{V_T16}, 15, v0")
    a(f"v_lshrrev_b32 v{V_G}, 4, v{V_L}")
    a(f"s_lshl_b32 s{S_TMP}, s{S_WAVE}, 5")
    a(f"s_add_u32 s{S_TMP}, s{S_TMP}, s{S_T0}")
    a(f"v_lshrrev_b32 v{T}, 3, v{V_L}")
    a(f"v_add_u32 v{T}, s{S_TMP}, v{T}")
    a(f"s_movk_i32 s{S_TMP + 1}, 1280")
    a(f"v_mul_lo_u32 v{T}, v{T}, s{S_TMP + 1}")
    a(f"v_and_b32 v{T + 1}, 7, v{V_L}")
    a(f"v_xor_b32 v{T + 1}, v{T + 1}, v{V_G}")
    a(f"v_lshlrev_b32 v{T + 2}, 4, v{T + 1}")
    a(f"v_xor_b32 v{T + 3}, 64, v{T + 2}")
    for n in range(4):
        a(f"v_add_u32 v{V_XD + n}, v{T}, v{T + 2 + (n & 1)}")
        if n:
            a(f"v_add_u32 v{V_XD + n}, {n * (8 * 1280 - 1024)}, v{V_XD + n}")
    a(f"s_mul_i32 s{S_TMP}, s{S_WAVE}, 320")
    for n in range(5):
        a(f"v_add_u32 v{T}, s{S_TMP}, v{V_L}")
        if n:
            a(f"v_add_u32 v{T}, {64 * n}, v{T}")
        a(f"v_mul_u32_u24 v{T + 1}, 3277, v{T}")
        a(f"v_lshrrev_b32 v{T + 1}, 16, v{T + 1}")
        a(f"v_mul_u32_u24 v{T + 2}, 20, v{T + 1}")
        a(f"v_sub_u32 v{T + 2}, v{T}, v{T + 2}")
        a(f"v_bfe_u32 v{T + 3}, v{T + 1}, 3, 1")
        a(f"v_lshlrev_b32 v{T + 3}, 1, v{T + 3}")
        a(f"v_xor_b32 v{T + 2}, v{T + 2}, v{T + 3}")
        a(f"v_lshlrev_b32 v{T + 2}, 4, v{T + 2}")
        a(f"v_mul_lo_u32 v{T + 1}, v{T + 1}, s{S_WSTRIDE}")
        a(f"v_add_u32 v{V_WD + n}, v{T + 1}, v{T + 2}")
        if 0 < n < 4:
            a(f"v_subrev_u32 v{V_WD + n}, {1024 * n}, v{V_WD + n}")
    a(f"s_lshl_b32 s{S_KW}, s{S_WCOL}, 1")
    a(f"s_mov_b32 s{S_KX}, 0")
    a(f"s_lshl_b32 s{S_TMP}, s{S_TH}, 6")
    a(f"v_add_u32 v{T}, s{S_TMP}, v{V_T16}")
    a(f"v_lshlrev_b32 v{T}, 7, v{T}")
    a(f"v_lshrrev_b32 v{T + 1}, 1, v{V_T16}")
    a(f"v_xor_b32 v{T + 1}, v{T + 1}, v{V_G}")
    a(f"v_lshl_add_u32 v{V_X0}, v{T + 1}, 4, v{T}")
    a(f"v_xor_b32 v{V_X1}, 64, v{V_X0}")
    a(f"v_lshrrev_b32 v{T}, 2, v{V_T16}")
    a(f"v_lshl_add_u32 v{T}, v{V_G}, 3, v{T}")
    a(f"v_mul_u32_u24 v{T}, 320, v{T}")
    a(f"v_and_b32 v{T + 1}, 3, v{V_T16}")
    a(f"v_lshl_add_u32 v{T}, v{T + 1}, 3, v{T}")
    a(f"s_mul_i32 s{S_TMP}, s{S_CC}, 160")
    a(f"s_add_u32 s{S_TMP}, s{S_TMP}, {WOFF}")
    a(f"v_add_u32 v{T}, s{S_TMP}, v{T}")
    a(f"v_and_b32 v{T + 1}, 1, v{V_G}")
    a(f"v_lshlrev_b32 v{T + 1}, 5, v{T + 1}")
    a(f"v_add_u32 v{T + 2}, v{T}, v{T + 1}")
    a(f"v_sub_u32 v{T + 3}, v{T}, v{T + 1}")
    a(f"s_cmp_eq_u32 s{S_CC}, 0")
    a(f"s_cselect_b64 vcc, -1, 0")
    a(f"v_cndmask_b32 v{V_WE}, v{T + 3}, v{T + 2}, vcc")
    a(f"v_cndmask_b32 v{V_WO}, v{T + 2}, v{T + 3}, vcc")
    a(f"s_mov_b32 s{S_ONES}, 0x3f803f80")


def dma_chunk_list(c):
    slot = (c % 4) * SLOT
    L = []
    for n in range(4):
        pre = None
        if n == 0:
            pre = [f"s_lshl_b32 s{S_TMP}, s{S_WAVE}, 12", f"s_add_u32 m0, s{S_TMP}, {slot}", f"s_mov_b32 s{S_TMP + 1}, {128 * c}"]
        L.append((pre, f"buffer_load_dwordx4 v{V_XD + n}, {srd(SRD_X)}, s{S_TMP + 1} offen offset:{1024 * n} lds"))
    for n in range(5):
        pre = None
        if n == 0:
            pre = [f"s_mul_i32 s{S_TMP + 2}, s{S_WAVE}, 5120", f"s_add_u32 m0, s{S_TMP + 2}, {slot + WOFF}",
                   f"s_mul_i32 s{S_TMP + 3}, s{S_WSTRIDE}, {64 * c}", f"s_add_u32 s{S_TMP + 3}, s{S_TMP + 3}, s{S_KW}"]
        if n == 4:
            pre = [f"s_add_u32 m0, s{S_TMP + 2}, {slot + WOFF + 4096}", "s_nop 0"]
        off = 1024 * n if n < 4 else 0
        L.append((pre, f"buffer_load_dwordx4 v{V_WD + n}, {srd(S_W1)}, s{S_TMP + 3} offen offset:{off} lds"))
    return L


V_MD = 21
V_MR = 25
V_MA = 27


def m2_setup(a, nb):
    T = ET
    rowb = 64 * nb
    if nb == 2:
        a(f"v_lshrrev_b32 v{T}, 3, v{V_L}")
        a(f"v_bfe_u32 v{T + 1}, v{V_L}, 4, 1")
        a(f"v_lshlrev_b32 v{T + 1}, 1, v{T + 1}")
        a(f"v_and_b32 v{T + 2}, 7, v{V_L}")
        a(f"v_xor_b32 v{T + 2}, v{T + 2}, v{T + 1}")
        a(f"v_lshlrev_b32 v{T + 2}, 4, v{T + 2}")
        a(f"v_xor_b32 v{T + 3}, 64, v{T + 2}")
        a(f"v_mul_u32_u24 v{T}, 3072, v{T}")
        for n in range(4):
            a(f"v_add_u32 v{V_MD + n}, v{T}, v{T + 2 + (n & 1)}")
            if n:
                a(f"v_add_u32 v{V_MD + n}, {n * (8 * 3072 - 1024)}, v{V_MD + n}")
        a(f"v_lshrrev_b32 v{T}, 2, v{V_T16}")
        a(f"v_lshl_add_u32 v{T}, v{V_G}, 3, v{T}")
        a(f"v_lshlrev_b32 v{T}, 7, v{T}")
        a(f"v_and_b32 v{T + 1}, 3, v{V_T16}")
        a(f"v_lshl_add_u32 v{T}, v{T + 1}, 3, v{T}")
        a(f"v_bfe_u32 v{T + 1}, v{V_T16}, 3, 1")
        a(f"v_and_b32 v{T + 2}, 1, v{V_G}")
        a(f"v_lshl_or_b32 v{T + 1}, v{T + 2}, 1, v{T + 1}")
        a(f"s_lshl_b32 s{S_TMP}, s{S_CC}, 1")
        for b in range(2):
            a(f"s_add_u32 s{S_TMP + 1}, s{S_TMP}, {b}")
            a(f"v_xor_b32 v{T + 2}, s{S_TMP + 1}, v{T + 1}")
            a(f"v_lshl_add_u32 v{V_MR + b}, v{T + 2}, 5, v{T}")
    else:
        a(f"v_lshrrev_b32 v{T}, 2, v{V_L}")
        a(f"v_lshrrev_b32 v{T + 1}, 5, v{V_L}")
        a(f"v_lshlrev_b32 v{T + 1}, 1, v{T + 1}")
        a(f"v_and_b32 v{T + 2}, 3, v{V_L}")
        a(f"v_xor_b32 v{T + 2}, v{T + 2}, v{T + 1}")
        a(f"v_lshlrev_b32 v{T + 2}, 4, v{T + 2}")
        a(f"v_mul_u32_u24 v{T}, 3072, v{T}")
        a(f"v_add_u32 v{V_MD}, v{T}, v{T + 2}")
        for n in range(1, 4):
            a(f"v_add_u32 v{V_MD + n}, {n * (16 * 3072 - 1024)}, v{V_MD}")
        a(f"v_lshrrev_b32 v{T}, 2, v{V_T16}")
        a(f"v_lshl_add_u32 v{T}, v{V_G}, 3, v{T}")
        a(f"v_lshlrev_b32 v{T}, 6, v{T}")
        a(f"v_and_b32 v{T + 1}, 3, v{V_T16}")
        a(f"v_lshl_add_u32 v{T}, v{T + 1}, 3, v{T}")
        a(f"v_and_b32 v{T + 2}, 1, v{V_G}")
        a(f"v_xor_b32 v{T + 2}, s{S_CC}, v{T + 2}")
        a(f"v_lshl_add_u32 v{V_MR}, v{T + 2}, 5, v{T}")


def m2_layout(nb):
    if nb == 2:
        return [(2, 0, 256), (3, 256, 256), (0, 512, 128)]
    return [(2, 0, 512), (3, 512, 128)]


def m2_dma_list(nb, vi):
    slot, k0, nrows = m2_layout(nb)[vi]
    rowb = 64 * nb
    nins = nrows * rowb // 1024
    per = nins // 4
    rows_per_ins = 1024 // rowb
    L = []
    for n in range(per):
        pre = None
        if n % 4 == 0:
            pre = [f"s_mul_i32 s{S_TMP}, s{S_WAVE}, {per * 1024}",
                   f"s_add_u32 m0, s{S_TMP}, {slot * SLOT + 1024 * n}",
                   f"s_mul_i32 s{S_TMP + 1}, s{S_WAVE}, {per * rows_per_ins * 3072}",
                   f"s_lshl_b32 s{S_TMP + 2}, s{S_M2COL}, 1",
                   f"s_add_u32 s{S_TMP + 1}, s{S_TMP + 1}, s{S_TMP + 2}",
                   f"s_add_u32 s{S_TMP + 1}, s{S_TMP + 1}, {(k0 + n * rows_per_ins) * 3072}"]
        nn = n % 4
        if per % 2 == 1 or (nb == 2 and (per * 1) % 2 == 1):
            raise AssertionError("parity")
        L.append((pre, f"buffer_load_dwordx4 v{V_MD + nn}, {srd(SRD_W1)}, s{S_TMP + 1} offen offset:{1024 * nn} lds"))
    return L


def emit_dma(a, item, tag):
    pre, ins = item
    if pre:
        for p in pre:
            a(p)
    a.vmem(ins, tag)


def first_pass(a, orient, do_cs, nb2, hooks=None):
    hooks = hooks or {}
    for c in range(4):
        for it in dma_chunk_list(c):
            emit_dma(a, it, ("dma", c))
    if "start" in hooks:
        hooks["start"](a)

    def reads(s):
        c, sl = s // 2, s % 2
        R = []
        wb = WB + 20 * (s % 2)
        for b in range(5):
            base = V_WAE if b % 2 == 0 else V_WAO
            for rd in range(2):
                R.append(f"ds_read_b64_tr_b16 v[{wb + 4 * b + 2 * rd}:{wb + 4 * b + 2 * rd + 1}], v{base} offset:{10240 * sl + 1280 * rd + 32 * b}")
        for tb in range(4):
            R.append(f"ds_read_b128 {xfrag(tb, s)}, v{V_XA1 if sl else V_XA0} offset:{2048 * tb}")
        return R

    def set_slot(c):
        slot = (c % 4) * SLOT
        a(f"v_add_u32 v{V_XA0}, {slot}, v{V_X0}")
        a(f"v_add_u32 v{V_XA1}, {slot}, v{V_X1}")
        a(f"v_add_u32 v{V_WAE}, {slot}, v{V_WE}")
        a(f"v_add_u32 v{V_WAO}, {slot}, v{V_WO}")

    for i in range(80):
        a(f"v_mov_b32 v{ACC + i}, 0")
    if do_cs:
        for b in range(5):
            a(f"v_mov_b32 v{V_CS + b}, 0")
    a.wait_vm(("dma", 0))
    a("s_barrier")
    set_slot(0)
    for r in reads(0):
        a.lds(r, ("rd", 0))
    for s in range(20):
        pend_dma = []
        a.wait_lg(("rd", s))
        if s % 2 == 1 and s < 19:
            c = (s + 1) // 2
            a.wait_vm(("dma", c))
            a("s_barrier")
            if "chunk" in hooks:
                hooks["chunk"](a, c)
            set_slot(c)
            nxt = c + 3
            if nxt <= 9:
                pend_dma = [(it, ("dma", nxt)) for it in dma_chunk_list(nxt)]
            else:
                vi = nxt - 10
                if vi < len(m2_layout(nb2)):
                    pend_dma = [(it, ("m2", vi)) for it in m2_dma_list(nb2, vi)]
        R = reads(s + 1) if s < 19 else []
        wb = WB + 20 * (s % 2)
        m = 0
        for b in range(5):
            for tb in range(4):
                wf = f"v[{wb + 4 * b}:{wb + 4 * b + 3}]"
                if orient == "T":
                    a(f"v_mfma_f32_16x16x32_bf16 {acc(b, tb)}, {wf}, {xfrag(tb, s)}, {acc(b, tb)}")
                else:
                    a(f"v_mfma_f32_16x16x32_bf16 {acc(b, tb)}, {xfrag(tb, s)}, {wf}, {acc(b, tb)}")
                if m < len(R):
                    a.lds(R[m], ("rd", s + 1))
                elif pend_dma and (m >= 14 or m % 2 == 1):
                    it, tag = pend_dma.pop(0)
                    emit_dma(a, it, tag)
                m += 1
            if do_cs:
                pass
        while pend_dma:
            it, tag = pend_dma.pop(0)
            emit_dma(a, it, tag)
        if do_cs:
            lab = a.newlabel("cs")
            a(f"s_cmp_lg_u32 s{S_TH}, {s % 2}")
            a(f"s_cbranch_scc1 {lab}")
            for j in range(4):
                for b in range(5):
                    a(f"v_dot2_f32_bf16 v{V_CS + b}, v{wb + 4 * b + j}, s{S_ONES}, v{V_CS + b}")
            a.label(lab)


V_CS = ET + 32


def second_pass(a, nb):
    lay = m2_layout(nb)
    rowb = 64 * nb

    def where(s):
        k = 32 * s
        for vi, (slot, k0, nrows) in enumerate(lay):
            if k0 <= k < k0 + nrows:
                return vi, slot, (k - k0) * rowb
        raise AssertionError

    def reads(s):
        vi, slot, off = where(s)
        wb = WB + 8 * (s % 3)
        R = []
        for b in range(nb):
            for rd in range(2):
                R.append(f"ds_read_b64_tr_b16 v[{wb + 4 * b + 2 * rd}:{wb + 4 * b + 2 * rd + 1}], v{V_MA + b} offset:{off + rd * 4 * rowb}")
        return R

    cur_slot = [None]

    def set_slot(s):
        vi, slot, off = where(s)
        if cur_slot[0] != slot:
            cur_slot[0] = slot
            for b in range(nb):
                a(f"v_add_u32 v{V_MA + b}, {slot * SLOT}, v{V_MR + b}")

    for i in range(16 * nb):
        a(f"v_mov_b32 v{ACC + i}, 0")
    for b in range(nb):
        a(f"v_mov_b32 v{V_CS + b}, 0")
    a.wait_vm([("m2", vi) for vi in range(len(lay))])
    a("s_barrier")
    for s0 in range(2):
        set_slot(s0)
        for r in reads(s0):
            a.lds(r, ("rd2", s0))
    for s in range(20):
        a.wait_lg(("rd2", s))
        R = []
        if s + 2 < 20:
            set_slot(s + 2)
            R = reads(s + 2)
        wb = WB + 8 * (s % 3)
        m = 0
        for b in range(nb):
            for tb in range(4):
                a(f"v_mfma_f32_16x16x32_bf16 {vr(ACC + 16 * b + 4 * tb, 4)}, v[{wb + 4 * b}:{wb + 4 * b + 3}], {xfrag(tb, s)}, {vr(ACC + 16 * b + 4 * tb, 4)}")
                if m < len(R):
                    a.lds(R[m], ("rd2", s + 2))
                m += 1
        lab = a.newlabel("cs2")
        a(f"s_cmp_lg_u32 s{S_TH}, {s % 2}")
        a(f"s_cbranch_scc1 {lab}")
        for j in range(4):
            for b in range(nb):
                a(f"v_dot2_f32_bf16 v{V_CS + b}, v{wb + 4 * b + j}, s{S_ONES}, v{V_CS + b}")
        a.label(lab)


def epilogue_qk(a):
    T = ET
    a(f"s_cmp_lt_u32 s{S_CG}, 4")
    a(f"s_cselect_b32 s{S_SCALE}, {fhex(QSCALE)}, 1.0")
    a(f"s_mov_b32 s{S_SCALE + 1}, s{S_SCALE}")
    a(f"s_mov_b32 s{S_TYPEBASE}, {WS_KLO}")
    a(f"s_cselect_b32 s{S_TYPEBASE}, {WS_QLO}, s{S_TYPEBASE}")
    a(f"s_and_b32 s{S_TMP}, s{S_CG}, 3")
    a(f"s_lshl_b32 s{S_TMP}, s{S_TMP}, 2")
    a(f"s_lshl_b32 s{S_TMP + 1}, s{S_CC}, 1")
    a(f"s_add_u32 s{S_TMP}, s{S_TMP}, s{S_TMP + 1}")
    a(f"s_lshl_b32 s{S_TMP + 1}, s{S_RB}, 2")
    a(f"s_lshl_b32 s{S_TMP + 2}, s{S_TH}, 1")
    a(f"s_add_u32 s{S_TMP + 1}, s{S_TMP + 1}, s{S_TMP + 2}")
    a(f"v_and_b32 v{T}, 1, v{V_G}")
    a(f"v_lshl_add_u32 v{T}, v{T}, 4, v{V_T16}")
    a(f"v_lshlrev_b32 v{T}, 4, v{T}")
    a(f"v_cmp_le_u32 vcc, 2, v{V_G}")
    a("s_nop 4")

    def oct_addr(o, tau, dst):
        ip, oo = o // 5, o % 5
        if oo == 2:
            a(f"s_add_u32 s{dst}, s{S_TMP}, {ip}")
            a(f"s_lshl_b32 s{dst}, s{dst}, 15")
            a(f"s_add_u32 s{S_TMP + 6}, s{S_TMP + 1}, {tau}")
            a(f"s_lshl_b32 s{S_TMP + 6}, s{S_TMP + 6}, 9")
            a(f"s_add_u32 s{dst}, s{dst}, s{S_TMP + 6}")
            a(f"s_add_u32 s{dst}, s{dst}, 0x200000")
        else:
            hsel = 0 if oo < 2 else 1
            half = oo if oo < 2 else oo - 3
            a(f"s_add_u32 s{dst}, s{S_TMP}, {ip}")
            a(f"s_lshl_b32 s{dst}, s{dst}, 1")
            a(f"s_add_u32 s{dst}, s{dst}, {hsel}")
            a(f"s_lshl_b32 s{dst}, s{dst}, 16")
            a(f"s_add_u32 s{S_TMP + 6}, s{S_TMP + 1}, {tau}")
            a(f"s_lshl_b32 s{S_TMP + 6}, s{S_TMP + 6}, 10")
            a(f"s_add_u32 s{dst}, s{dst}, s{S_TMP + 6}")
            if half:
                a(f"s_add_u32 s{dst}, s{dst}, 512")

    a("s_nop 7")
    k = 0
    for b in range(5):
        for tau in range(2):
            P = T + 4 + 8 * (k % 3)
            AD = P + 4
            k += 1
            for t2 in range(2):
                tb = 2 * tau + t2
                r = ACC + 16 * b + 4 * tb
                a(f"v_pk_mul_f32 v[{r}:{r + 1}], v[{r}:{r + 1}], {sp(S_SCALE)}")
                a(f"v_pk_mul_f32 v[{r + 2}:{r + 3}], v[{r + 2}:{r + 3}], {sp(S_SCALE)}")
                a(f"v_cvt_pk_bf16_f32 v{P + 2 * t2}, v{r}, v{r + 1}")
                a(f"v_cvt_pk_bf16_f32 v{P + 2 * t2 + 1}, v{r + 2}, v{r + 3}")
            oct_addr(2 * b, tau, S_TMP + 3)
            oct_addr(2 * b + 1, tau, S_TMP + 4)
            a(f"v_mov_b32 v{AD}, s{S_TMP + 3}")
            a(f"v_mov_b32 v{AD + 1}, s{S_TMP + 4}")
            a(f"v_permlane16_swap_b32 v{P}, v{P + 2}")
            a(f"v_permlane16_swap_b32 v{P + 1}, v{P + 3}")
            a(f"v_cndmask_b32 v{AD}, v{AD}, v{AD + 1}, vcc")
            a(f"v_add_u32 v{AD}, v{AD}, v{T}")
            a.vmem(f"buffer_store_dwordx4 v[{P}:{P + 3}], v{AD}, {srd(SRD_WS)}, s{S_TYPEBASE} offen sc1", "st1")


def epilogue_v(a):
    T = ET
    a(f"s_sub_u32 s{S_TMP}, s{S_CG}, 8")
    a(f"s_lshl_b32 s{S_TMP}, s{S_TMP}, 3")
    a(f"s_mul_i32 s{S_TMP}, s{S_TMP}, 81920")
    a(f"s_lshl_b32 s{S_TMP + 1}, s{S_RB}, 2")
    a(f"s_lshl_b32 s{S_TMP + 2}, s{S_TH}, 1")
    a(f"s_add_u32 s{S_TMP + 1}, s{S_TMP + 1}, s{S_TMP + 2}")
    a(f"s_mul_i32 s{S_TMP + 1}, s{S_TMP + 1}, 1280")
    a(f"s_add_u32 s{S_TMP}, s{S_TMP}, s{S_TMP + 1}")
    a(f"s_add_u32 s{S_TYPEBASE}, s{S_TMP}, {WS_V}")
    a(f"v_lshrrev_b32 v{T}, 1, v{V_G}")
    a(f"v_mul_u32_u24 v{T}, 640, v{T}")
    a(f"v_and_b32 v{T + 1}, 1, v{V_G}")
    a(f"v_mul_u32_u24 v{T + 1}, 320, v{T + 1}")
    a(f"v_add_u32 v{T}, v{T}, v{T + 1}")
    a(f"s_mul_i32 s{S_TMP + 2}, s{S_CC}, 80")
    a(f"s_mov_b32 s{S_TMP + 3}, 81920")
    a("s_nop 7")
    k = 0
    for b in range(5):
        AD = T + 2
        a(f"v_add_u32 v{AD}, s{S_TMP + 2}, v{V_T16}")
        if b:
            a(f"v_add_u32 v{AD}, {16 * b}, v{AD}")
        a(f"v_mul_u32_u24 v{AD + 1}, 3277, v{AD}")
        a(f"v_lshrrev_b32 v{AD + 1}, 16, v{AD + 1}")
        a(f"v_mul_u32_u24 v{AD + 2}, 20, v{AD + 1}")
        a(f"v_sub_u32 v{AD}, v{AD}, v{AD + 2}")
        a(f"v_lshlrev_b32 v{AD}, 4, v{AD}")
        a(f"v_mul_lo_u32 v{AD + 1}, v{AD + 1}, s{S_TMP + 3}")
        a(f"v_add3_u32 v{AD + 4 + b}, v{AD}, v{AD + 1}, v{T}")
    for b in range(5):
        for tau in range(2):
            P = T + 12 + 4 * (k % 4)
            k += 1
            for t2 in range(2):
                tb = 2 * tau + t2
                r = ACC + 16 * b + 4 * tb
                a(f"v_cvt_pk_bf16_f32 v{P + 2 * t2}, v{r}, v{r + 1}")
                a(f"v_cvt_pk_bf16_f32 v{P + 2 * t2 + 1}, v{r + 2}, v{r + 3}")
            a("s_nop 1")
            a(f"v_permlane32_swap_b32 v{P}, v{P + 2}")
            a(f"v_permlane32_swap_b32 v{P + 1}, v{P + 3}")
            a.vmem(f"buffer_store_dwordx4 v[{P}:{P + 3}], v{T + 6 + b}, {srd(SRD_WS)}, s{S_TYPEBASE} offen offset:{1280 * tau} sc1", "st1")


def epilogue_mlp(a, nb, x4):
    T = ET
    ST = WB
    B1 = WB + 16
    CSQ = WB + 28
    BQ = WB + 32
    a(f"s_lshl_b32 s{S_TMP}, s{S_TH}, 6")
    a(f"s_add_u32 s{S_TMP}, s{S_TMP}, s{S_T0}")
    a(f"v_add_u32 v{T}, s{S_TMP}, v{V_T16}")
    a(f"v_lshlrev_b32 v{T}, 4, v{T}")
    for tb in range(4):
        a.vmem(f"buffer_load_dwordx4 v[{ST + 4 * tb}:{ST + 4 * tb + 3}], v{T}, {srd(SRD_WS)}, 0 offen offset:{WS_STATS + 256 * tb} sc1", "stats")
    a(f"v_lshlrev_b32 v{T + 1}, 3, v{V_G}")
    a(f"s_lshl_b32 s{S_TMP + 1}, s{S_MCOL}, 1")
    a(f"v_add_u32 v{T + 1}, s{S_TMP + 1}, v{T + 1}")
    for b in range(nb):
        a.vmem(f"global_load_dwordx2 v[{B1 + 2 * b}:{B1 + 2 * b + 1}], v{T + 1}, {sp(S_B1)} offset:{32 * b}", "b1")
    a("s_nop 2")
    for b in range(nb):
        c = V_CS + b
        a(f"v_mov_b32 v{T + 2}, v{c}")
        a("s_nop 1")
        a(f"v_permlane32_swap_b32 v{T + 2}, v{c}")
        a(f"v_add_f32 v{c}, v{c}, v{T + 2}")
        a(f"v_mov_b32 v{T + 2}, v{c}")
        a("s_nop 1")
        a(f"v_permlane16_swap_b32 v{T + 2}, v{c}")
        a(f"v_add_f32 v{c}, v{c}, v{T + 2}")
    a(f"s_mul_i32 s{S_TMP}, s{S_WAVE}, 320")
    a(f"s_add_u32 s{S_TMP}, s{S_TMP}, {LDS_EXTRA}")
    a(f"v_lshl_add_u32 v{T + 2}, v{V_T16}, 2, s{S_TMP}")
    for b in range(nb):
        a.lds(f"ds_write_b32 v{T + 2}, v{V_CS + b} offset:{64 * b}", "csw")
    a.wait_lg()
    a("s_barrier")
    a(f"s_mul_i32 s{S_TMP}, s{S_CC}, 640")
    a(f"s_add_u32 s{S_TMP}, s{S_TMP}, {LDS_EXTRA}")
    a(f"v_lshl_add_u32 v{T + 2}, v{V_G}, 4, s{S_TMP}")
    VC1, VC2 = T + 28, T + 30
    a(f"v_mov_b32 v{VC1}, {fhex(GC1)}")
    a(f"v_mov_b32 v{VC1 + 1}, {fhex(GC1)}")
    a(f"v_mov_b32 v{VC2}, {fhex(GC2)}")
    a(f"v_mov_b32 v{VC2 + 1}, {fhex(GC2)}")
    a(f"s_mov_b32 s{S_C1}, 1.0")
    a(f"s_mov_b32 s{S_C1 + 1}, 1.0")
    a(f"s_lshr_b32 s{S_TMP + 1}, s{S_T0}, 4")
    a(f"s_lshl_b32 s{S_TMP + 2}, s{S_TH}, 2")
    a(f"s_add_u32 s{S_TMP + 1}, s{S_TMP + 1}, s{S_TMP + 2}")
    a(f"s_mul_i32 s{S_TMP + 1}, s{S_TMP + 1}, {48 * 1024}")
    a(f"s_add_u32 s{S_TYPEBASE}, s{S_TMP + 1}, {WS_H}")
    a(f"v_lshlrev_b32 v{T + 3}, 4, v{V_L}")
    a.wait_vm(["stats", "b1"])
    PK = T + 8
    G1, G2 = T + 24, T + 28
    for b in range(nb):
        a.lds(f"ds_read_b128 v[{CSQ}:{CSQ + 3}], v{T + 2} offset:{64 * b}", "csr")
        a.lds(f"ds_read_b128 v[{G1}:{G1 + 3}], v{T + 2} offset:{320 + 64 * b}", "csr")
        a(f"v_lshlrev_b32 v{BQ}, 16, v{B1 + 2 * b}")
        a(f"v_and_b32 v{BQ + 1}, 0xffff0000, v{B1 + 2 * b}")
        a(f"v_lshlrev_b32 v{BQ + 2}, 16, v{B1 + 2 * b + 1}")
        a(f"v_and_b32 v{BQ + 3}, 0xffff0000, v{B1 + 2 * b + 1}")
        a.wait_lg("csr")
        a(f"v_pk_add_f32 v[{CSQ}:{CSQ + 1}], v[{CSQ}:{CSQ + 1}], v[{G1}:{G1 + 1}]")
        a(f"v_pk_add_f32 v[{CSQ + 2}:{CSQ + 3}], v[{CSQ + 2}:{CSQ + 3}], v[{G1 + 2}:{G1 + 3}]")
        for tb in range(4):
            r = ACC + 16 * b + 4 * tb
            st = ST + 4 * tb
            for h2 in range(2):
                x = f"v[{r + 2 * h2}:{r + 2 * h2 + 1}]"
                g1 = f"v[{G1 + 2 * h2}:{G1 + 2 * h2 + 1}]"
                a(f"v_pk_fma_f32 {x}, v[{CSQ + 2 * h2}:{CSQ + 2 * h2 + 1}], v[{st}:{st + 1}], {x} op_sel_hi:[1,0,1] neg_lo:[1,0,0] neg_hi:[1,0,0]")
                a(f"v_pk_fma_f32 {x}, {x}, v[{st}:{st + 1}], v[{BQ + 2 * h2}:{BQ + 2 * h2 + 1}] op_sel:[0,1,0] op_sel_hi:[1,1,1]")
                a(f"v_pk_mul_f32 {g1}, {x}, {x}")
                a(f"v_pk_fma_f32 {g1}, {g1}, v[{VC2}:{VC2 + 1}], v[{VC1}:{VC1 + 1}]")
                a(f"v_pk_mul_f32 {g1}, {g1}, {x}")
            for i in range(4):
                a(f"v_exp_f32 v{G1 + i}, v{G1 + i}")
            for h2 in range(2):
                x = f"v[{r + 2 * h2}:{r + 2 * h2 + 1}]"
                a(f"v_pk_add_f32 v[{G1 + 2 * h2}:{G1 + 2 * h2 + 1}], v[{G1 + 2 * h2}:{G1 + 2 * h2 + 1}], {sp(S_C1)}")
                a(f"v_pk_mul_f32 {x}, {x}, v[{st + 2}:{st + 3}] op_sel:[0,1] op_sel_hi:[1,1]")
            for i in range(4):
                a(f"v_rcp_f32 v{G1 + i}, v{G1 + i}")
            a("s_nop 0")
            for h2 in range(2):
                x = f"v[{r + 2 * h2}:{r + 2 * h2 + 1}]"
                a(f"v_pk_mul_f32 {x}, {x}, v[{G1 + 2 * h2}:{G1 + 2 * h2 + 1}]")
            pk = PK + 4 * tb + (2 * (b % 2) if x4 else 0)
            a(f"v_cvt_pk_bf16_f32 v{pk}, v{r}, v{r + 1}")
            a(f"v_cvt_pk_bf16_f32 v{pk + 1}, v{r + 2}, v{r + 3}")
            if not x4:
                if tb == 0:
                    a(f"s_lshr_b32 s{S_TMP + 1}, s{S_MCOL}, 4")
                    a(f"s_add_u32 s{S_TMP + 1}, s{S_TMP + 1}, {b}")
                    a(f"s_and_b32 s{S_TMP + 2}, s{S_TMP + 1}, 1")
                    a(f"s_lshl_b32 s{S_TMP + 2}, s{S_TMP + 2}, 3")
                    a(f"s_lshr_b32 s{S_TMP + 1}, s{S_TMP + 1}, 1")
                    a(f"s_lshl_b32 s{S_TMP + 1}, s{S_TMP + 1}, 10")
                    a(f"s_add_u32 s{S_TMP + 1}, s{S_TMP + 1}, s{S_TMP + 2}")
                    a(f"s_add_u32 s{S_TMP + 1}, s{S_TMP + 1}, s{S_TYPEBASE}")
                a(f"s_add_u32 s{S_TMP + 3}, s{S_TMP + 1}, {tb * 48 * 1024}")
                a.vmem(f"buffer_store_dwordx2 v[{pk}:{pk + 1}], v{T + 3}, {srd(SRD_WS)}, s{S_TMP + 3} offen sc1", "st2")
            elif b == 1:
                if tb == 0:
                    a(f"s_lshr_b32 s{S_TMP + 1}, s{S_MCOL}, 5")
                    a(f"s_lshl_b32 s{S_TMP + 1}, s{S_TMP + 1}, 10")
                    a(f"s_add_u32 s{S_TMP + 1}, s{S_TMP + 1}, s{S_TYPEBASE}")
                a(f"s_add_u32 s{S_TMP + 3}, s{S_TMP + 1}, {tb * 48 * 1024}")
                a.vmem(f"buffer_store_dwordx4 v[{pk - 2}:{pk + 1}], v{T + 3}, {srd(SRD_WS)}, s{S_TMP + 3} offen sc1", "st2")


def body_p1(a, hooks=None, after_setup=None):
    hooks = hooks or {}
    stamp(a, 0)
    setup(a)
    if after_setup:
        after_setup(a)
    L_v, L_m, L_join, L_end = a.newlabel("p1v"), a.newlabel("p1m"), a.newlabel("p1join"), a.newlabel("p1end")
    a(f"s_cmp_ge_u32 s{S_CG}, 12")
    a(f"s_cbranch_scc1 {L_m}")
    m2_setup(a, 2)
    a(f"s_cmp_ge_u32 s{S_CG}, 8")
    a(f"s_cbranch_scc1 {L_v}")
    st = (list(a.vm), list(a.lg))
    first_pass(a, "T", False, 2, hooks)
    stamp(a, 1)
    epilogue_qk(a)
    st_qk = (list(a.vm), list(a.lg))
    a(f"s_branch {L_join}")
    a.label(L_v)
    a.vm, a.lg = list(st[0]), list(st[1])
    first_pass(a, "N", False, 2, hooks)
    stamp(a, 1)
    epilogue_v(a)
    assert a.vm == st_qk[0] and a.lg == st_qk[1], (a.vm, st_qk[0])
    a.label(L_join)
    stamp(a, 2)
    second_pass(a, 2)
    stamp(a, 3)
    if "qkv_done" in hooks:
        a("s_waitcnt vmcnt(0)")
        a.vm = []
        a("s_barrier")
        hooks["qkv_done"](a)
        hooks["init_wait"](a)
    a(f"s_lshl_b32 s{S_MCOL}, s{S_CC}, 5")
    a(f"s_add_u32 s{S_MCOL}, s{S_MCOL}, s{S_M2COL}")
    epilogue_mlp(a, 2, True)
    a(f"s_branch {L_end}")
    a.label(L_m)
    a.vm, a.lg = list(st[0]), list(st[1])
    m2_setup(a, 1)
    first_pass(a, "T", True, 1, hooks)
    stamp(a, 1)
    a(f"s_mul_i32 s{S_MCOL}, s{S_CC}, 80")
    a(f"s_add_u32 s{S_MCOL}, s{S_MCOL}, s{S_WCOL}")
    a("s_nop 7")
    if "init_wait" in hooks:
        hooks["init_wait"](a)
    epilogue_mlp(a, 5, False)
    a("s_barrier")
    stamp(a, 2)
    second_pass(a, 1)
    stamp(a, 3)
    a(f"s_lshl_b32 s{S_MCOL}, s{S_CC}, 4")
    a(f"s_add_u32 s{S_MCOL}, s{S_MCOL}, s{S_M2COL}")
    epilogue_mlp(a, 1, False)
    a.label(L_end)


def kernel_p1(name):
    a = Asm()
    a.kname = name
    prologue(a)
    body_p1(a)
    stamp(a, 4)
    a("s_waitcnt vmcnt(0)")
    stamp(a, 5)
    a("s_waitcnt vmcnt(0)")
    a.label("L_exit_" + name)
    a("s_endpgm")
    return kernel_header(name) + a.text(), kernel_desc(name, 512, 256)
```

```python
import sys, os
sys.path.insert(0, os.path.dirname(os.path.abspath(__file__)))
from common import *
from asmlib import check_hazards
import ph_stats, ph_p1, ph_attn, ph_p4, merged

HEADER = open("gated_mix__softmax_full_mha__mixer_channel_mlp__prompt.s.ref").read().split("; Override launch")[0]

def build(kernels, launches):
    txt = HEADER
    for (k, g, b, l) in launches:
        if k is None:
            txt += f"; @launch grid=({g},1,1) block=({b},1,1) lds={l}\n"
        else:
            txt += f"; @launch kernel={k} grid=({g},1,1) block=({b},1,1) lds={l}\n"
    txt += '.amdgcn_target "amdgcn-amd-amdhsa--gfx950"\n.text\n'
    for body, desc in kernels:
        check_hazards(body)
        txt += body
    txt += '.section .rodata,"a"\n'
    for body, desc in kernels:
        txt += ".p2align 6\n" + desc
    return txt

if __name__ == "__main__":
    import common
    if "--prof" in sys.argv:
        common.PROFILE_ON[0] = True
        sys.argv.remove("--prof")
    for arg in list(sys.argv):
        if arg.startswith("--exp="):
            ph_attn.EXP.update(arg[6:].split(","))
            sys.argv.remove(arg)
    out = sys.argv[1] if len(sys.argv) > 1 and not sys.argv[1].startswith("--") else "out.s"
    if "--multi" not in sys.argv:
        open(out, "w").write(build([merged.kernel()], [(None, 256, 256, 163840)]))
        print("wrote", out, os.path.getsize(out))
        sys.exit(0)
    ks = [ph_stats.kernel_stats("stats_kernel"), ph_p1.kernel_p1("p1_kernel"), ph_attn.kernel_attn("attn_kernel"), ph_p4.kernel_p4("p4_kernel")]
    ls = [("stats_kernel", 256, 256, 0), ("p1_kernel", 256, 256, 163840), ("attn_kernel", 256, 256, 163840), ("p4_kernel", 256, 256, 163840)]
    open(out, "w").write(build(ks, ls))
    print("wrote", out, os.path.getsize(out))
```

```python
import re


def vr(r, n=1, kind="v"):
    if n == 1:
        return f"{kind}{r}"
    return f"{kind}[{r}:{r + n - 1}]"


class Reg:
    def __init__(self, kind, idx):
        self.kind, self.idx = kind, idx

    def r(self, n=1, off=0):
        return vr(self.idx + off, n, self.kind)

    def __repr__(self):
        return f"{self.kind}{self.idx}"


class Asm:
    def __init__(self):
        self.lines = []
        self.vm = []
        self.lg = []
        self.uid = 0

    def __call__(self, s):
        for l in s.split("\n"):
            l = l.rstrip()
            if l.strip() == "":
                continue
            if not l.startswith((" ", "\t")) and not l.rstrip().endswith(":") and not l.startswith((".", ";")):
                l = "    " + l
            self.lines.append(l)

    def c(self, s):
        self.lines.append("    ; " + s)

    def label(self, name):
        self.lines.append(name + ":")

    def newlabel(self, base):
        self.uid += 1
        return f"L_{base}_{self.uid}"

    def vmem(self, s, tag=None):
        self(s)
        self.vm.append(tag)

    def lds(self, s, tag=None):
        self(s)
        self.lg.append(tag)

    def wait_vm(self, tags=None):
        n = self._need(self.vm, tags)
        if n is None:
            return
        assert n <= 63, f"vmcnt {n} too large"
        self(f"s_waitcnt vmcnt({n})")
        self.vm = self.vm[len(self.vm) - n:] if n else []

    def wait_lg(self, tags=None):
        n = self._need(self.lg, tags)
        if n is None:
            return
        if n > 15:
            n = 15
        self(f"s_waitcnt lgkmcnt({n})")
        self.lg = self.lg[len(self.lg) - n:] if n else []

    def wait_both(self, vtags=None, ltags=None):
        self.wait_vm(vtags)
        self.wait_lg(ltags)

    @staticmethod
    def _need(q, tags):
        if tags is None:
            return 0 if q else None
        if not isinstance(tags, (list, set)):
            tags = [tags]
        last = -1
        for i, t in enumerate(q):
            if t in tags:
                last = i
        if last < 0:
            return None
        return len(q) - 1 - last

    def reset_counters(self):
        self.vm, self.lg = [], []

    def text(self):
        return "\n".join(self.lines) + "\n"


TRANS = ("v_exp_f32", "v_log_f32", "v_rcp_f32", "v_rsq_f32", "v_sqrt_f32", "v_sin_f32", "v_cos_f32",
         "v_exp_f16", "v_rcp_f16", "v_rcp_iflag_f32")
_RANGE = re.compile(r"^(-?)(abs\()?\s*([vas])\[(\d+):(\d+)\]\)?$")
_ONE = re.compile(r"^(-?)(abs\()?\s*([vas])(\d+)\)?$")


def _regs(tok):
    tok = tok.strip()
    m = _RANGE.match(tok)
    if m:
        return {(m.group(3), i) for i in range(int(m.group(4)), int(m.group(5)) + 1)}
    m = _ONE.match(tok)
    if m:
        return {(m.group(3), int(m.group(4)))}
    if tok == "vcc":
        return {("s", "vcc")}
    if tok in ("vcc_lo", "vcc_hi"):
        return {("s", "vcc")}
    if tok in ("exec", "exec_lo", "exec_hi"):
        return {("s", "exec")}
    if tok == "m0":
        return {("s", "m0")}
    return set()


class Ins:
    __slots__ = ("op", "text", "dst", "src", "cls", "passes", "ws", "srcC", "srcAB", "line", "target", "lds_dma",
                 "wide_store_data")

    def __init__(self, text, line):
        self.text, self.line = text, line
        body = text.split(";")[0].strip()
        parts = body.split(None, 1)
        self.op = parts[0]
        rest = parts[1] if len(parts) > 1 else ""
        toks = []
        depth = 0
        cur = ""
        for ch in rest:
            if ch == "[":
                depth += 1
            if ch == "]":
                depth -= 1
            if ch == "," and depth == 0:
                toks.append(cur.strip())
                cur = ""
            else:
                cur += ch
        if cur.strip():
            toks.append(cur.strip())
        mods = ""
        if toks:
            sp = toks[-1].split(None, 1)
            toks[-1] = sp[0]
            mods = sp[1] if len(sp) > 1 else ""
        op = self.op
        self.dst, self.src = set(), set()
        self.passes = 0
        self.ws = 1
        self.srcC = set()
        self.srcAB = set()
        self.target = None
        self.lds_dma = False
        self.wide_store_data = set()
        R = [_regs(t) for t in toks]
        if op.startswith("v_mfma"):
            self.cls = "mfma"
            self.passes = 4 if "16x16" in op else 8
            self.dst = R[0]
            self.srcAB = R[1] | R[2]
            self.srcC = R[3] if len(R) > 3 else set()
            self.src = self.srcAB | self.srcC
        elif op.startswith("v_"):
            self.cls = "valu"
            base = op.replace("_e32", "").replace("_e64", "").replace("_sdwa", "").replace("_dpp", "")
            if base.startswith("v_cmp"):
                self.dst = R[0]
                self.src = set().union(*R[1:]) if len(R) > 1 else set()
                if base.startswith("v_cmpx"):
                    self.dst |= {("s", "exec")}
            elif base.startswith("v_permlane") and "swap" in base:
                self.dst = R[0] | R[1]
                self.src = R[0] | R[1]
            elif base in ("v_add_co_u32", "v_sub_co_u32", "v_subrev_co_u32"):
                self.dst = R[0] | R[1]
                self.src = set().union(*R[2:])
            elif base in ("v_addc_co_u32", "v_subb_co_u32"):
                self.dst = R[0] | R[1]
                self.src = set().union(*R[2:])
            else:
                self.dst = R[0] if R else set()
                self.src = set().union(*R[1:]) if len(R) > 1 else set()
                if base.startswith(("v_fmac", "v_pk_fmac", "v_dot2c", "v_writelane")):
                    self.src |= R[0]
                if base.startswith("v_cndmask") and len(R) == 3:
                    self.src |= {("s", "vcc")}
                if "UNUSED_PRESERVE" in mods:
                    self.src |= R[0]
        elif op.startswith("ds_"):
            self.cls = "ds"
            if op.startswith(("ds_read", "ds_swizzle", "ds_bpermute", "ds_permute")):
                self.dst = R[0]
                self.src = set().union(*R[1:]) if len(R) > 1 else set()
            else:
                self.src = set().union(*R) if R else set()
        elif op.startswith(("buffer_", "global_")):
            self.cls = "vmem"
            allmods = rest
            if op in ("buffer_inv", "buffer_wbl2"):
                pass
            elif "_load" in op:
                if re.search(r"\blds\b", allmods) or "load_lds" in op:
                    self.lds_dma = True
                    self.src = set().union(*R) | {("s", "m0")}
                else:
                    self.dst = R[0]
                    self.src = set().union(*R[1:])
            elif "_store" in op:
                self.src = set().union(*R)
                if "x4" in op or "x3" in op:
                    self.wide_store_data = R[0] if op.startswith("buffer_") else R[1]
            elif "atomic" in op:
                self.src = set().union(*R)
                if "sc0" in allmods:
                    self.dst = R[0]
        elif op.startswith("s_"):
            self.cls = "salu"
            if op == "s_nop":
                self.ws = int(toks[0], 0) + 1
            elif op.startswith(("s_cbranch", "s_branch")):
                self.target = toks[0]
            elif op.startswith(("s_cmp", "s_bitcmp", "s_waitcnt", "s_barrier", "s_endpgm", "s_sleep", "s_setprio")):
                self.src = set().union(*R) if R else set()
            else:
                self.dst = R[0] if R else set()
                self.src = set().union(*R[1:]) if len(R) > 1 else set()
                if "saveexec" in op:
                    self.dst |= {("s", "exec")}
        else:
            self.cls = "other"

    def isv(self, r):
        return r[0] in ("v", "a")


def check_hazards(text, verbose=True, maxrep=40):
    ins, labels = [], {}
    for ln, raw in enumerate(text.split("\n"), 1):
        s = raw.strip()
        if not s or s.startswith(";") or s.startswith("."):
            continue
        m = re.match(r"^([A-Za-z_][\w.$]*):\s*(.*)$", s)
        if m:
            labels[m.group(1)] = len(ins)
            s = m.group(2).strip()
            if not s or s.startswith(";"):
                continue
        ins.append(Ins(s, ln))
    n = len(ins)
    preds = [[] for _ in range(n)]
    for i, I in enumerate(ins):
        nxt = i + 1
        if I.op == "s_endpgm":
            continue
        if I.op == "s_branch":
            t = labels.get(I.target)
            if t is not None and t < n:
                preds[t].append(i)
            continue
        if I.target is not None:
            t = labels.get(I.target)
            if t is not None and t < n:
                preds[t].append(i)
        if nxt < n:
            preds[nxt].append(i)
    problems = []

    def need(P, C):
        w = 0
        Pv = {r for r in P.dst if r[0] in "va"}
        Ps = {r for r in P.dst if r[0] == "s"}
        if P.cls == "valu":
            if C.cls == "mfma" and Pv & C.src:
                w = max(w, 2)
            if C.cls == "valu":
                if P.op.replace("_e32", "").replace("_e64", "") in TRANS and Pv & C.src and \
                        C.op.replace("_e32", "").replace("_e64", "") not in TRANS:
                    w = max(w, 1)
                if P.op.replace("_e32", "").replace("_e64", "") in TRANS and Pv & C.src:
                    w = max(w, 1)
                if C.op.startswith("v_permlane") and Pv & C.src:
                    w = max(w, 2)
                if ("dpp" in C.text or "row_" in C.text or "quad_perm" in C.text) and Pv & C.src:
                    w = max(w, 2)
                if C.op.startswith(("v_readlane", "v_readfirstlane")) and Pv & C.src:
                    w = max(w, 1)
                if Ps & C.src:
                    w = max(w, 2)
                    if C.op.startswith(("v_readlane", "v_writelane")):
                        w = max(w, 4)
                if ("sdwa" in P.text or "op_sel" in P.text and not P.op.startswith("v_pk")) and Pv & (C.src | C.dst):
                    w = max(w, 1)
            if P.op.startswith("v_dot") and Pv & (C.src | C.dst):
                if not (C.op == P.op and not (Pv & (C.src - C.dst)) ):
                    w = max(w, 3)
            if C.cls == "vmem" and Ps & C.src:
                w = max(w, 5)
            if ("s", "exec") in P.dst and C.cls == "mfma":
                w = max(w, 4)
        if P.cls == "mfma":
            p8 = P.passes == 8
            if C.cls == "mfma":
                if Pv & C.srcAB:
                    w = max(w, 12 if p8 else 8)
                if Pv & C.srcC:
                    if not (C.srcC == P.dst and C.passes == P.passes):
                        w = max(w, 10 if p8 else 6)
                elif Pv & C.dst and not (Pv & C.srcC):
                    w = max(w, 10 if p8 else 6)
            elif C.cls in ("valu", "ds", "vmem"):
                if Pv & (C.src | C.dst):
                    w = max(w, 12 if p8 else 8)
            if C.cls == "valu" and P.srcC & {r for r in C.dst if r[0] in "va"}:
                w = max(w, 7 if p8 else 3)
        if P.cls == "vmem" and P.wide_store_data:
            if C.cls == "valu" and P.wide_store_data & C.dst:
                w = max(w, 2)
            elif P.wide_store_data & C.dst:
                w = max(w, 1)
        if P.cls == "salu" and ("s", "m0") in P.dst and C.lds_dma:
            w = max(w, 1)
        return w

    MAXW = 12
    for ci, C in enumerate(ins):
        if C.cls not in ("valu", "mfma", "ds", "vmem"):
            continue
        stack = [(p, 0) for p in preds[ci]]
        seen = {}
        while stack:
            pi, dist = stack.pop()
            if pi in seen and seen[pi] <= dist:
                continue
            seen[pi] = dist
            P = ins[pi]
            w = need(P, C)
            if w > dist:
                problems.append((C.line, f"line {C.line}: '{C.text}' needs {w} wait states after line {P.line} '{P.text}', has {dist}"))
            nd = dist + P.ws
            if nd < MAXW:
                for q in preds[pi]:
                    stack.append((q, nd))
    problems = sorted(set(problems))
    if verbose:
        for _, p in problems[:maxrep]:
            print("HAZARD", p)
        print(f"hazard check: {len(problems)} problem(s) in {n} instructions")
    return problems


class Weaver:
    def __init__(self, a, cap=2):
        self.a, self.cap = a, cap
        self.q = []
        self.m = 0

    def queue(self):
        q = []
        self.q.append(q)
        return q

    def step(self, ins, cap=None):
        a = self.a
        a(ins)
        room = self.cap if cap is None else cap
        progress = True
        while room > 0 and progress:
            progress = False
            for q in self.q:
                if q and q[0][0] <= self.m and (q[0][2] <= room or room == self.cap):
                    pos, fn, w = q.pop(0)
                    fn()
                    room -= w
                    progress = True
                    if room <= 0:
                        break
        self.m += 1

    def flush(self, q=None):
        for qq in ([q] if q is not None else self.q):
            while qq:
                pos, fn, w = qq.pop(0)
                fn()
```

```python
from asmlib import Asm, vr

S, D, H, F = 2048, 640, 32, 1536

WS_STATS = 0x0
WS_FLAG = 0x10000
WS_QLO = 0x100000
WS_QHI = 0x300000
WS_KLO = 0x400000
WS_KHI = 0x600000
WS_V = 0x700000
WS_H = 0xA00000
WS_O = 0x1000000
WS_SIZE = 0x1400000

SRD_X, SRD_WQKV, SRD_WO, SRD_W1, SRD_W2, SRD_WS, SRD_OUT = 4, 8, 12, 16, 20, 24, 28
S_B1, S_B2, S_GATE, S_DBG = 32, 34, 36, 38
S_WAVE = 40
S_WG = 41


def srd(n):
    return f"s[{n}:{n + 3}]"


def sp(n):
    return f"s[{n}:{n + 1}]"


def prologue(a, nwg=256):
    a(f"s_cmp_ge_u32 s2, {nwg}")
    a("s_cbranch_scc1 L_exit_" + a.kname)
    a(f"s_load_dwordx2 {sp(SRD_X)}, s[0:1], 0")
    a(f"s_load_dwordx2 {sp(SRD_WQKV)}, s[0:1], 8")
    a(f"s_load_dwordx2 {sp(SRD_WO)}, s[0:1], 16")
    a(f"s_load_dwordx2 {sp(SRD_W1)}, s[0:1], 32")
    a(f"s_load_dwordx2 {sp(S_B1)}, s[0:1], 40")
    a(f"s_load_dwordx2 {sp(SRD_W2)}, s[0:1], 48")
    a(f"s_load_dwordx2 {sp(S_B2)}, s[0:1], 56")
    a(f"s_load_dwordx2 {sp(S_GATE)}, s[0:1], 64")
    a(f"s_load_dwordx2 {sp(SRD_OUT)}, s[0:1], 72")
    a(f"s_load_dwordx2 {sp(S_DBG)}, s[0:1], 80")
    a(f"s_load_dwordx2 {sp(SRD_WS)}, s[0:1], 88")
    a("v_lshrrev_b32 v1, 6, v0")
    a(f"s_mov_b32 s{S_WG}, s2")
    for r, sz in ((SRD_X, S * D * 2), (SRD_WQKV, D * 3 * D * 2), (SRD_WO, D * D * 2), (SRD_W1, D * F * 2),
                  (SRD_W2, F * D * 2), (SRD_WS, WS_SIZE), (SRD_OUT, S * D * 2)):
        a(f"s_mov_b32 s{r + 2}, {sz}")
        a(f"s_mov_b32 s{r + 3}, 0x00020000")
    a(f"v_readfirstlane_b32 s{S_WAVE}, v1")
    a("s_waitcnt lgkmcnt(0)")


def kernel_header(name):
    return f""".globl {name}
.p2align 8
.type {name},@function
{name}:
"""


def kernel_desc(name, vgpr, accum, sgpr=102):
    return f""".amdhsa_kernel {name}
  .amdhsa_next_free_vgpr {vgpr}
  .amdhsa_next_free_sgpr {sgpr}
  .amdhsa_accum_offset {accum}
  .amdhsa_group_segment_fixed_size 0
  .amdhsa_kernarg_size 96
  .amdhsa_user_sgpr_count 2
  .amdhsa_user_sgpr_kernarg_segment_ptr 1
  .amdhsa_system_sgpr_workgroup_id_x 1
  .amdhsa_float_denorm_mode_32 3
  .amdhsa_float_denorm_mode_16_64 3
.end_amdhsa_kernel
"""


def f32bits(x):
    import struct
    return struct.unpack("<I", struct.pack("<f", x))[0]


def fhex(x):
    return f"0x{f32bits(x):08x}"


WS_PROF = 0x1300000
PROFILE = False


def stamp(a, idx):
    if not PROFILE_ON[0]:
        return
    a("s_waitcnt lgkmcnt(0)")
    a("s_memtime s[90:91]")
    a("s_memrealtime s[92:93]")
    a("s_waitcnt lgkmcnt(0)")
    a.lg = []
    a(f"s_lshl_b32 s94, s{S_WG}, 2")
    a(f"s_add_u32 s94, s94, s{S_WAVE}")
    a("s_lshl_b32 s94, s94, 3")
    a(f"s_add_u32 s94, s94, {WS_PROF + idx * 8192}")
    a("v_mov_b32 v254, s90")
    a("v_mov_b32 v255, s92")
    a("s_mov_b64 s[96:97], exec")
    a("s_mov_b64 exec, 1")
    a(f"v_mov_b32 v253, 0")
    a(f"buffer_store_dwordx2 v[254:255], v253, {srd(SRD_WS)}, s94 offen")
    a("s_mov_b64 exec, s[96:97]")
    if a.vm is not None:
        a.vm.append("stamp")


PROFILE_ON = [False]

F1 = WS_FLAG
F2 = WS_FLAG + 1024
F3 = WS_FLAG + 2048
SPIN_MAX = 1 << 20
S_SPIN = 84
S_SAVE = 86


def poll(a, load, nlanes, expect, vt, err, ge=False):
    L, Ld, Lt = a.newlabel("poll"), a.newlabel("polled"), a.newlabel("polltmo")
    a(f"s_mov_b64 {sp(S_SAVE)}, exec")
    m = (1 << nlanes) - 1
    a(f"s_mov_b32 exec_lo, {hex(m & 0xffffffff)}")
    a(f"s_mov_b32 exec_hi, {hex(m >> 32)}")
    a(f"s_mov_b32 s{S_SPIN}, {SPIN_MAX}")
    a.label(L)
    a(load)
    a("s_waitcnt vmcnt(0)")
    a(f"v_cmp_gt_u32 vcc, {expect}, v{vt}" if ge else f"v_cmp_ne_u32 vcc, {expect}, v{vt}")
    a("s_cmp_eq_u64 vcc, 0")
    a(f"s_cbranch_scc1 {Ld}")
    a(f"s_sub_u32 s{S_SPIN}, s{S_SPIN}, 1")
    a(f"s_cmp_eq_u32 s{S_SPIN}, 0")
    a(f"s_cbranch_scc1 {Lt}")
    a("s_sleep 2")
    a(f"s_branch {L}")
    a.label(Lt)
    a(f"v_mov_b32 v{vt}, {err}")
    a(f"v_mov_b32 v{vt + 1}, 252")
    a(f"global_store_dword v{vt + 1}, v{vt}, {sp(S_DBG)}")
    a.label(Ld)
    a(f"s_mov_b64 exec, {sp(S_SAVE)}")
    a.vm = []


def set_flag(a, soff_reg, vt):
    L = a.newlabel("noflag")
    a(f"s_cmp_lg_u32 s{S_WAVE}, 0")
    a(f"s_cbranch_scc1 {L}")
    a(f"s_mov_b64 {sp(S_SAVE)}, exec")
    a("s_mov_b64 exec, 1")
    a(f"v_mov_b32 v{vt}, 0")
    a(f"v_mov_b32 v{vt + 1}, 1")
    a(f"buffer_store_dword v{vt + 1}, v{vt}, {srd(SRD_WS)}, s{soff_reg} offen sc1")
    a(f"s_mov_b64 exec, {sp(S_SAVE)}")
    a.label(L)


def poll_begin(a, load, nlanes):
    m = (1 << nlanes) - 1
    a(f"s_mov_b32 exec_lo, {hex(m & 0xffffffff)}")
    a(f"s_mov_b32 exec_hi, {hex(m >> 32)}")
    a.vmem(load, "pollb")
    a("s_mov_b64 exec, -1")


def poll_end(a, load, nlanes, expect, vt, err):
    L = a.newlabel("pollok")
    m = (1 << nlanes) - 1
    a.wait_vm("pollb")
    a(f"s_mov_b32 exec_lo, {hex(m & 0xffffffff)}")
    a(f"s_mov_b32 exec_hi, {hex(m >> 32)}")
    a(f"v_cmp_ne_u32 vcc, {expect}, v{vt}")
    a("s_mov_b64 exec, -1")
    a("s_cmp_eq_u64 vcc, 0")
    a(f"s_cbranch_scc1 {L}")
    keep = list(a.vm)
    poll(a, load, nlanes, expect, vt, err)
    a.vm = keep
    a.label(L)
```

```python
from common import *
import ph_stats, ph_p1 as p1, ph_attn as at, ph_p4 as p4

KNAME = "gated_mix__softmax_full_mha__mixer_channel_mlp__prompt_kernel"
S_F1, S_F2, S_F3 = 98, 99, 100


def flag_offsets(a):
    t = 88
    a(f"s_and_b32 s{t}, s{S_WG}, 7")
    a(f"s_lshr_b32 s{t + 1}, s{S_WG}, 3")
    a(f"s_lshl_b32 s{S_F3}, s{t}, 2")
    a(f"s_lshr_b32 s{S_F1}, s{t + 1}, 3")
    a(f"s_add_u32 s{S_F3}, s{S_F3}, s{S_F1}")
    a(f"s_and_b32 s{S_F1}, s{t + 1}, 7")
    a(f"s_lshl_b32 s{S_F1}, s{S_F1}, 5")
    a(f"s_add_u32 s{S_F3}, s{S_F3}, s{S_F1}")
    a(f"s_lshl_b32 s{S_F3}, s{S_F3}, 2")
    a(f"s_add_u32 s{S_F3}, s{S_F3}, {F3}")
    a(f"s_lshl_b32 s{S_F1}, s{p1.S_CG}, 4")
    a(f"s_add_u32 s{S_F1}, s{S_F1}, s{p1.S_RB}")
    a(f"s_lshl_b32 s{S_F1}, s{S_F1}, 2")
    a(f"s_add_u32 s{S_F1}, s{S_F1}, {F1}")
    a(f"s_lshl_b32 s{S_F2}, s{p1.S_RB}, 4")
    a(f"s_add_u32 s{S_F2}, s{S_F2}, s{p1.S_CG}")
    a(f"s_lshl_b32 s{S_F2}, s{S_F2}, 2")
    a(f"s_add_u32 s{S_F2}, s{S_F2}, {F2}")


def zero_flags(a, vt):
    L = a.newlabel("nozero")
    a(f"s_cmp_lg_u32 s{S_WAVE}, 0")
    a(f"s_cbranch_scc1 {L}")
    a(f"s_mov_b64 {sp(S_SAVE)}, exec")
    a("s_mov_b64 exec, 1")
    a(f"v_mov_b32 v{vt}, 0")
    for s in (S_F1, S_F2, S_F3):
        a(f"buffer_store_dword v{vt}, v{vt}, {srd(SRD_WS)}, s{s} offen sc1")
    a(f"s_mov_b64 exec, {sp(S_SAVE)}")
    a.label(L)


def init_arrive(a, vt):
    L = a.newlabel("noarr")
    a(f"s_cmp_lg_u32 s{S_WAVE}, 0")
    a(f"s_cbranch_scc1 {L}")
    a(f"s_mov_b64 {sp(S_SAVE)}, exec")
    a("s_mov_b64 exec, 1")
    a(f"s_and_b32 s88, s{S_WG}, 3")
    a("s_lshl_b32 s88, s88, 6")
    a(f"v_mov_b32 v{vt}, s88")
    a(f"v_mov_b32 v{vt + 1}, 1")
    a(f"global_atomic_add v{vt}, v{vt + 1}, {sp(S_DBG)}")
    a(f"s_mov_b64 exec, {sp(S_SAVE)}")
    a.label(L)


def init_wait(a, vt):
    a(f"v_and_b32 v{vt + 2}, 3, v0")
    a(f"v_lshlrev_b32 v{vt + 2}, 6, v{vt + 2}")
    poll(a, f"global_load_dword v{vt}, v{vt + 2}, {sp(S_DBG)} sc1", 4, 64, vt, 0xE1, ge=True)


def wait_qkv(a, vt):
    g = 88
    a(f"s_lshr_b32 s{g}, s{at.S_HEAD}, 3")
    a(f"v_and_b32 v{vt + 2}, 63, v0")
    a(f"v_subrev_u32 v{vt + 3}, 2, v{vt + 2}")
    a(f"s_add_u32 s{g + 1}, s{g}, 4")
    a(f"s_lshl_b32 s{g + 1}, s{g + 1}, 4")
    a(f"v_lshrrev_b32 v{vt + 4}, 4, v{vt + 3}")
    a(f"v_lshlrev_b32 v{vt + 4}, 6, v{vt + 4}")
    a(f"v_and_b32 v{vt + 3}, 15, v{vt + 3}")
    a(f"v_add3_u32 v{vt + 3}, v{vt + 3}, v{vt + 4}, s{g + 1}")
    a(f"s_lshl_b32 s{g + 1}, s{g}, 4")
    a(f"s_lshl_b32 s{g + 2}, s{at.S_QB}, 1")
    a(f"s_add_u32 s{g + 1}, s{g + 1}, s{g + 2}")
    a(f"v_add_u32 v{vt + 4}, s{g + 1}, v{vt + 2}")
    a(f"v_cmp_gt_u32 vcc, 2, v{vt + 2}")
    a("s_nop 1")
    a(f"v_cndmask_b32 v{vt + 3}, v{vt + 3}, v{vt + 4}, vcc")
    a(f"v_lshlrev_b32 v{vt + 2}, 2, v{vt + 3}")
    a(f"v_add_u32 v{vt + 2}, {F1}, v{vt + 2}")
    poll(a, f"buffer_load_dword v{vt}, v{vt + 2}, {srd(SRD_WS)}, 0 offen sc1", 34, 1, vt, 0xE2)


def h_flags_addr(a, vt):
    a(f"s_lshr_b32 s88, s{p4.S_TB}, 1")
    a("s_lshl_b32 s88, s88, 6")
    a(f"s_add_u32 s88, s88, {F2}")
    a(f"v_and_b32 v{vt + 2}, 15, v0")
    a(f"v_lshlrev_b32 v{vt + 2}, 2, v{vt + 2}")
    a(f"v_add_u32 v{vt + 2}, s88, v{vt + 2}")
    return f"buffer_load_dword v{vt}, v{vt + 2}, {srd(SRD_WS)}, 0 offen sc1"


def wait_o(a):
    vt = 240
    a(f"s_lshr_b32 s88, s{p4.S_TB}, 2")
    a("s_lshl_b32 s88, s88, 7")
    a(f"s_add_u32 s88, s88, {F3}")
    a(f"v_and_b32 v{vt + 2}, 31, v0")
    a(f"v_lshlrev_b32 v{vt + 2}, 2, v{vt + 2}")
    a(f"v_add_u32 v{vt + 2}, s88, v{vt + 2}")
    poll(a, f"buffer_load_dword v{vt}, v{vt + 2}, {srd(SRD_WS)}, 0 offen sc1", 32, 1, vt, 0xE4)


def kernel():
    a = Asm()
    a.kname = KNAME
    prologue(a)
    hooks = {}

    def h_start(a):
        ph_stats.stats_compute(a)
        zero_flags(a, 200)
    def h_chunk(a, c):
        if c == 4:
            init_arrive(a, 240)
    hooks["start"] = h_start
    hooks["chunk"] = h_chunk
    hooks["init_wait"] = lambda a: init_wait(a, 240)

    def h_qkv_done(a):
        set_flag(a, S_F1, 240)
    hooks["qkv_done"] = h_qkv_done

    ph_stats.stats_issue(a)
    p1.body_p1(a, hooks, lambda a: flag_offsets(a))
    stamp(a, 4)
    def a_ready(a):
        wait_qkv(a, 240)
    def a_first_barrier(a):
        set_flag(a, S_F2, 240)
    groups = p4.prefetch_groups(246)
    state = {}

    def fillers(n):
        L = []
        if n == 16:
            def f():
                state["load"] = h_flags_addr(a, 240)
                poll_begin(a, state["load"], 16)
            L.append(f)
        if n == 22:
            L.append(lambda: poll_end(a, state["load"], 16, 1, 240, 0xE3))
        if n >= 24 and groups:
            g, tag = groups.pop(0)
            L.append(lambda g=g, tag=tag: p4.emit_group(a, g, tag))
        return L
    at.body_attn(a, True, a_ready, a_first_barrier, lambda a: p4.setup(a, 246), fillers)
    assert not groups
    a("s_waitcnt vmcnt(0)")
    a.vm = []
    a("s_barrier")
    set_flag(a, S_F3, 240)
    stamp(a, 12)
    p4.body_p4(a, wait_o)
    a("s_waitcnt vmcnt(0)")
    stamp(a, 18)
    a("s_waitcnt vmcnt(0)")
    a.label("L_exit_" + KNAME)
    a("s_endpgm")
    return kernel_header(KNAME) + a.text(), kernel_desc(KNAME, 512, 256)
```

```python
from common import *

ABASE = 102400
KLO_O, KHI_O, V_O = 0, 8192, 12288
VT = 1408
BUF = V_O + 8 * VT
XCH = ABASE
XFLAG = ABASE + 2 * BUF

S_HEAD, S_QB, S_QQ, S_KH = 46, 47, 48, 49
S_LK, S_LH, S_LV = 50, 51, 52
S_IT = 53
S_T = 54
S_LK0, S_LH0, S_LV0 = 64, 65, 66
S_EXEC = 68
S_MODE = 70
S_LO32 = 72
S_VM = 74
S_M0K, S_M0H, S_M0V = 67, 71, 80

V_L = 1
V_KA, V_KH, V_VA = 2, 3, 4
G_K, G_V = 5, 6
V_TOK = 13
V_T = 14
Q = 20
KB = 44
VB = 56
SS = 72
PP = 104
STG = 120
NEGM = 144
TMP = 208


def qlo(q): return f"v[{Q + 6 * q}:{Q + 6 * q + 3}]"
def qhi(q): return f"v[{Q + 6 * q + 4}:{Q + 6 * q + 5}]"
def klo(t): return f"v[{KB + 6 * (t % 2)}:{KB + 6 * (t % 2) + 3}]"
def khi(t): return f"v[{KB + 6 * (t % 2) + 4}:{KB + 6 * (t % 2) + 5}]"
def vfr(t, f): return f"v[{VB + 8 * (t % 2) + 4 * f}:{VB + 8 * (t % 2) + 4 * f + 3}]"
def sreg(n): return SS + 16 * (n % 2)
def preg(n): return PP + 8 * (n % 2)
def oacc(q): return f"a[{16 * q}:{16 * q + 15}]"


def setup(a):
    T = V_T
    a(f"s_and_b32 s{S_T}, s{S_WG}, 7")
    a(f"s_lshr_b32 s{S_T + 1}, s{S_WG}, 3")
    a(f"s_lshl_b32 s{S_HEAD}, s{S_T}, 2")
    a(f"s_lshr_b32 s{S_T + 2}, s{S_T + 1}, 3")
    a(f"s_add_u32 s{S_HEAD}, s{S_HEAD}, s{S_T + 2}")
    a(f"s_and_b32 s{S_QB}, s{S_T + 1}, 7")
    a(f"s_and_b32 s{S_QQ}, s{S_WAVE}, 1")
    a(f"s_lshr_b32 s{S_KH}, s{S_WAVE}, 1")
    a(f"s_mov_b32 s{S_LO32}, -1")
    a(f"s_mov_b32 s{S_LO32 + 1}, 0")
    a(f"v_and_b32 v{V_L}, 63, v0")
    a(f"v_and_b32 v{V_TOK}, 31, v0")
    a(f"s_lshl_b32 s{S_T}, s{S_KH}, 12")
    a(f"s_add_u32 s{S_T}, s{S_T}, {ABASE + KLO_O}")
    a(f"v_lshl_add_u32 v{V_KA}, v{V_L}, 4, s{S_T}")
    a(f"s_lshl_b32 s{S_T}, s{S_KH}, 11")
    a(f"s_and_b32 s{S_T + 1}, s{S_HEAD}, 1")
    a(f"s_lshl_b32 s{S_T + 1}, s{S_T + 1}, 3")
    a(f"s_add_u32 s{S_T}, s{S_T}, s{S_T + 1}")
    a(f"s_add_u32 s{S_T}, s{S_T}, {ABASE + KHI_O}")
    a(f"v_lshl_add_u32 v{V_KH}, v{V_TOK}, 4, s{S_T}")
    a(f"v_lshrrev_b32 v{T}, 5, v{V_L}")
    a(f"v_mul_u32_u24 v{T + 1}, 352, v{T}")
    a(f"v_min_u32 v{T + 2}, 21, v{V_TOK}")
    a(f"v_lshl_add_u32 v{T + 1}, v{T + 2}, 4, v{T + 1}")
    a(f"s_mul_i32 s{S_T}, s{S_KH}, {4 * VT}")
    a(f"s_add_u32 s{S_T}, s{S_T}, {ABASE + V_O}")
    a(f"v_add_u32 v{V_VA}, s{S_T}, v{T + 1}")
    a(f"v_lshlrev_b32 v{G_K}, 4, v{V_L}")
    a(f"s_and_b32 s{S_T + 1}, s{S_WAVE}, 1")
    a(f"s_lshl_b32 s{S_T + 2}, s{S_KH}, 5")
    a(f"s_lshl_b32 s{S_T + 3}, s{S_T + 1}, 1")
    a(f"s_add_u32 s{S_T + 3}, s{S_T + 3}, s{S_T + 2}")
    a(f"s_lshl_b32 s{S_LK0}, s{S_HEAD}, 16")
    a(f"s_lshl_b32 s{S_T + 4}, s{S_T + 3}, 10")
    a(f"s_add_u32 s{S_LK0}, s{S_LK0}, s{S_T + 4}")
    a(f"s_add_u32 s{S_LK0}, s{S_LK0}, {WS_KLO}")
    a(f"s_lshr_b32 s{S_LH0}, s{S_HEAD}, 1")
    a(f"s_lshl_b32 s{S_LH0}, s{S_LH0}, 15")
    a(f"s_lshl_b32 s{S_T + 4}, s{S_T + 3}, 9")
    a(f"s_add_u32 s{S_LH0}, s{S_LH0}, s{S_T + 4}")
    a(f"s_add_u32 s{S_LH0}, s{S_LH0}, {WS_KHI}")
    a(f"s_mul_i32 s{S_LV0}, s{S_HEAD}, 81920")
    a(f"s_add_u32 s{S_LV0}, s{S_LV0}, {WS_V}")
    a(f"s_lshl_b32 s{S_M0K}, s{S_WAVE}, 11")
    a(f"s_add_u32 s{S_M0K}, s{S_M0K}, {ABASE + KLO_O}")
    a(f"s_lshl_b32 s{S_M0H}, s{S_WAVE}, 10")
    a(f"s_add_u32 s{S_M0H}, s{S_M0H}, {ABASE + KHI_O}")
    a(f"s_mul_i32 s{S_T + 4}, s{S_WAVE}, 3")
    for m in range(3):
        a(f"s_add_u32 s{S_T + 5}, s{S_T + 4}, {m}")
        a(f"s_min_u32 s{S_T + 5}, s{S_T + 5}, 10")
        a(f"s_lshl_b32 s{S_M0V + m}, s{S_T + 5}, 10")
        a(f"s_add_u32 s{S_M0V + m}, s{S_M0V + m}, {ABASE + V_O}")
        a(f"s_lshl_b32 s{S_T + 5}, s{S_T + 5}, 6")
        a(f"v_add_u32 v{T}, s{S_T + 5}, v{V_L}")
        a(f"v_mul_u32_u24 v{T + 1}, 2979, v{T}")
        a(f"v_lshrrev_b32 v{T + 1}, 16, v{T + 1}")
        a(f"v_mul_u32_u24 v{T + 2}, 22, v{T + 1}")
        a(f"v_sub_u32 v{T}, v{T}, v{T + 2}")
        a(f"v_cmp_gt_u32 s[{S_VM + 2 * m}:{S_VM + 2 * m + 1}], 20, v{T}")
        a(f"v_mul_u32_u24 v{T + 2}, 320, v{T + 1}")
        a(f"v_lshl_add_u32 v{T + 2}, v{T}, 4, v{T + 2}")
        a(f"v_lshrrev_b32 v{T + 1}, 4, v{T + 1}")
        a(f"v_mul_u32_u24 v{T + 1}, {28 * 1280}, v{T + 1}")
        a(f"v_add_u32 v{G_V + m}, v{T + 1}, v{T + 2}")


def init_lds_consts(a):
    T = TMP
    a(f"v_lshrrev_b32 v{T}, 5, v{V_L}")
    a(f"v_mul_u32_u24 v{T}, {BUF}, v{T}")
    a(f"v_mul_u32_u24 v{T + 1}, 352, v{V_TOK}")
    a(f"v_add_u32 v{T}, v{T}, v{T + 1}")
    a(f"v_add_u32 v{T}, {ABASE + V_O + 320}, v{T}")
    for i in range(4):
        a(f"v_mov_b32 v{T + 4 + i}, 0x3f803f80")
        a(f"v_mov_b32 v{T + 8 + i}, 0")
    a.lds(f"ds_write_b128 v{T}, v[{T + 4}:{T + 7}]", "ci")
    a.lds(f"ds_write_b128 v{T}, v[{T + 8}:{T + 11}] offset:16", "ci")


def load_q(a):
    T = TMP
    a(f"s_lshl_b32 s{S_T}, s{S_QB}, 3")
    a(f"s_lshl_b32 s{S_T + 1}, s{S_QQ}, 2")
    a(f"s_add_u32 s{S_T}, s{S_T}, s{S_T + 1}")
    a(f"s_lshl_b32 s{S_T + 1}, s{S_HEAD}, 16")
    a(f"s_lshl_b32 s{S_T + 2}, s{S_T}, 10")
    a(f"s_add_u32 s{S_T + 1}, s{S_T + 1}, s{S_T + 2}")
    a(f"s_add_u32 s{S_T + 1}, s{S_T + 1}, {WS_QLO}")
    a(f"s_lshr_b32 s{S_T + 2}, s{S_HEAD}, 1")
    a(f"s_lshl_b32 s{S_T + 2}, s{S_T + 2}, 15")
    a(f"s_lshl_b32 s{S_T + 3}, s{S_T}, 9")
    a(f"s_add_u32 s{S_T + 2}, s{S_T + 2}, s{S_T + 3}")
    a(f"s_and_b32 s{S_T + 3}, s{S_HEAD}, 1")
    a(f"s_lshl_b32 s{S_T + 3}, s{S_T + 3}, 3")
    a(f"s_add_u32 s{S_T + 2}, s{S_T + 2}, s{S_T + 3}")
    a(f"s_add_u32 s{S_T + 2}, s{S_T + 2}, {WS_QHI}")
    a(f"v_lshlrev_b32 v{T}, 4, v{V_TOK}")
    for qi in range(4):
        a(f"v_mov_b32 v{Q + 6 * qi + 4}, 0")
        a(f"v_mov_b32 v{Q + 6 * qi + 5}, 0")
    for qi in range(4):
        a.vmem(f"buffer_load_dwordx4 {qlo(qi)}, v{G_K}, {srd(SRD_WS)}, s{S_T + 1} offen offset:{1024 * qi} sc1", "q")
    a(f"s_mov_b64 exec, {sp(S_LO32)}")
    for qi in range(4):
        a.vmem(f"buffer_load_dwordx2 {qhi(qi)}, v{T}, {srd(SRD_WS)}, s{S_T + 2} offen offset:{512 * qi} sc1", "q")
    a("s_mov_b64 exec, -1")


def stage_items(buf):
    o = buf * BUF
    L = [[f"s_add_u32 m0, s{S_M0K}, {o}", "s_nop 0", f"buffer_load_dwordx4 v{G_K}, {srd(SRD_WS)}, s{S_LK} offen sc1 lds"],
         [f"s_add_u32 m0, s{S_M0K}, {o}", "s_nop 0", f"buffer_load_dwordx4 v{G_K}, {srd(SRD_WS)}, s{S_LK} offen offset:1024 sc1 lds"],
         [f"s_add_u32 m0, s{S_M0H}, {o}", "s_nop 0", f"buffer_load_dwordx4 v{G_K}, {srd(SRD_WS)}, s{S_LH} offen sc1 lds"]]
    for m in range(3):
        L.append([f"s_add_u32 m0, s{S_M0V + m}, {o}", f"s_mov_b64 exec, {sp(S_VM + 2 * m)}",
                  f"buffer_load_dwordx4 v{G_V + m}, {srd(SRD_WS)}, s{S_LV} offen sc1 lds", "s_mov_b64 exec, -1"])
    L.append([f"s_add_u32 s{S_LK}, s{S_LK}, 4096", f"s_add_u32 s{S_LH}, s{S_LH}, 2048", f"s_add_u32 s{S_LV}, s{S_LV}, 5120"])
    return L


def emit_group(a, grp, tag="stg"):
    for ins in grp:
        if ins.startswith("buffer_"):
            a.vmem(ins, tag)
        else:
            a(ins)


def kreads(t):
    tt = t % 8
    o = (tt // 4) * BUF
    return [f"ds_read_b128 {klo(t)}, v{V_KA} offset:{o + (tt % 4) * 1024}", f"ds_read_b64 {khi(t)}, v{V_KH} offset:{o + (tt % 4) * 512}"]


def vreads(t):
    tt = t % 8
    o = (tt // 4) * BUF + (tt % 4) * VT
    return [f"ds_read_b128 {vfr(t, 0)}, v{V_VA} offset:{o}", f"ds_read_b128 {vfr(t, 1)}, v{V_VA} offset:{o + 704}"]


def s_mfmas(n, mode):
    t, q = n // 4, n % 4
    s = sreg(n)
    c = "0" if mode != "safe" else f"v[{NEGM + 16 * q}:{NEGM + 16 * q + 15}]"
    return [f"v_mfma_f32_32x32x16_bf16 v[{s}:{s + 15}], {klo(t)}, {qlo(q)}, {c}",
            f"v_mfma_f32_32x32x8_bf16 v[{s}:{s + 15}], {khi(t)}, {qhi(q)}, v[{s}:{s + 15}]"]


def pv_mfmas(n):
    t, q = (n // 4), n % 4
    p = preg(n)
    return [f"v_mfma_f32_32x32x16_bf16 {oacc(q)}, {vfr(t, 0)}, v[{p}:{p + 3}], {oacc(q)}",
            f"v_mfma_f32_32x32x16_bf16 {oacc(q)}, {vfr(t, 1)}, v[{p + 4}:{p + 7}], {oacc(q)}"]


EXP = set()


def main_loop(a, mode, first_barrier=None, unrolled=False, fillers=None):
    pv = mode != "max"
    a(f"s_mov_b32 s{S_LK}, s{S_LK0}")
    a(f"s_mov_b32 s{S_LH}, s{S_LH0}")
    a(f"s_mov_b32 s{S_LV}, s{S_LV0}")
    for grp in stage_items(0):
        emit_group(a, grp, ("stg", 0))
    if pv:
        for i in range(64):
            a(f"v_accvgpr_write_b32 a{i}, 0")
        for i in range(8):
            a(f"v_mov_b32 v{PP + 8 + i}, 0")
            a(f"v_mov_b32 v{VB + 8 + i}, 0")
    else:
        for q in range(4):
            a(f"v_mov_b32 v{NEGM + 16 * q}, 0xff800000")
    a.wait_vm()
    a.wait_lg()
    a("s_barrier")
    if first_barrier:
        first_barrier(a)
    for grp in stage_items(1):
        emit_group(a, grp, ("stg", 1))
    for r in kreads(0):
        a.lds(r, ("k", 0))
    a.wait_lg()
    for m in s_mfmas(0, mode):
        a(m)
    if pv:
        for r in vreads(0):
            a.lds(r, ("v", 0))
    a("s_nop 11")
    if mode == "fast":
        keep = list(a.lg)
        stamp(a, 10)
        a.lg = keep
    start_state = list(a.lg)
    if not unrolled:
        a(f"s_mov_b32 s{S_IT}, 0")
        L = a.newlabel("att_" + mode)
        a(".p2align 6")
        a.label(L)
    NH = 128 if unrolled else 32
    for n in range(NH):
        t, q = n // 4, n % 4
        cg, hs = n // 16, n % 16
        s = sreg(n)
        p = preg(n)
        last = unrolled and n == NH - 1
        sm = s_mfmas(n + 1, mode) if not last else []
        pm = pv_mfmas(n - 1) if pv else []
        more = not (unrolled and t == 31)
        if q == 3 and more:
            a.wait_lg(("k", t + 1))
        extra = {0: [], 1: [], 2: [], 3: []}
        if q == 0 and more:
            kr = kreads(t + 1)
            extra[0].append((kr[0], ("k", t + 1)))
            extra[1].append((kr[1], ("k", t + 1)))
        if pv and q == 1 and more:
            extra[2].append((vreads(t + 1)[0], ("v", t + 1)))
        if pv and q == 2 and more:
            extra[2].append((vreads(t + 1)[1], ("v", t + 1)))
        grp = None
        if unrolled:
            if 12 <= hs <= 15 and cg + 2 <= 7:
                grp = (stage_items(cg % 2)[hs - 12], ("stg", cg + 2))
            if hs <= 2 and 1 <= cg and cg + 1 <= 7:
                grp = (stage_items((cg + 1) % 2)[4 + hs], ("stg", cg + 1))
        mf = sm + pm if not last else [None, None] + pm
        for g in range(4):
            if pv and g == 2 and q == 1:
                a.wait_lg(("v", t))
            if g < len(mf) and mf[g] is not None:
                a(mf[g])
            for ins, tag in extra[g]:
                a.lds(ins, tag)
            if g == 3 or (not pv and g == 1):
                if grp:
                    emit_group(a, grp[0], grp[1])
                if fillers:
                    for fn in fillers(n):
                        fn()
            if pv:
                for j in range(4):
                    a(f"v_exp_f32 v{s + 4 * g + j}, v{s + 4 * g + j}")
                if g > 0:
                    for j in range(2):
                        a(f"v_cvt_pk_bf16_f32 v{p + 2 * (g - 1) + j}, v{s + 4 * (g - 1) + 2 * j}, v{s + 4 * (g - 1) + 2 * j + 1}")
            else:
                m = NEGM + 16 * q
                if g == 0:
                    a("s_nop 9")
                for j in range(2):
                    a(f"v_max3_f32 v{m}, v{s + 4 * g + 2 * j}, v{s + 4 * g + 2 * j + 1}, v{m}")
        if pv:
            for j in range(2):
                a(f"v_cvt_pk_bf16_f32 v{p + 6 + j}, v{s + 12 + 2 * j}, v{s + 12 + 2 * j + 1}")
        if hs == 11 and not (unrolled and cg == 7):
            if unrolled:
                a.wait_vm(("stg", cg + 1))
            else:
                a("s_waitcnt vmcnt(0)")
                a.vm = []
            a("s_waitcnt lgkmcnt(0)")
            a("s_barrier")
            a.lg = []
        if hs == 12 and not unrolled:
            lab = a.newlabel("noload")
            a(f"s_cmp_ge_u32 s{S_IT}, 3")
            a(f"s_cbranch_scc1 {lab}")
            for g2 in stage_items(cg % 2):
                emit_group(a, g2)
            a.vm = []
            a.label(lab)
    if not unrolled:
        a(f"s_add_u32 s{S_IT}, s{S_IT}, 1")
        a(f"s_cmp_lt_u32 s{S_IT}, 4")
        a(f"s_cbranch_scc1 {L}")
        assert len(a.lg) == len(start_state), (a.lg, start_state)
    a.wait_lg()
    a("s_nop 1")
    if pv:
        for m in pv_mfmas(NH - 1):
            a(m)


def finish(a, L_redo):
    T = TMP
    R = SS
    OWN = 72
    PAR = 144
    a(f"s_lshl_b32 s{S_T}, s{S_QB}, 3")
    a(f"s_lshl_b32 s{S_T + 1}, s{S_QQ}, 2")
    a(f"s_add_u32 s{S_T}, s{S_T}, s{S_T + 1}")
    a(f"s_lshl_b32 s{S_T + 1}, s{S_KH}, 1")
    a(f"s_add_u32 s{S_T}, s{S_T}, s{S_T + 1}")
    a(f"s_lshl_b32 s{S_T + 1}, s{S_T}, 9")
    a(f"v_lshlrev_b32 v{T}, 4, v{V_TOK}")
    for e in range(2):
        a.vmem(f"buffer_load_dword v{T + 2 + e}, v{T}, {srd(SRD_WS)}, s{S_T + 1} offen offset:{WS_STATS + 8 + 512 * e} sc1", "g")
    a("s_nop 7")
    a("s_nop 3")
    Lk1, Lj = a.newlabel("kh1"), a.newlabel("khj")
    a(f"s_cmp_eq_u32 s{S_KH}, 1")
    a(f"s_cbranch_scc1 {Lk1}")
    for kh in range(2):
        if kh == 1:
            a.label(Lk1)
        for e in range(2):
            for i in range(12):
                a(f"v_accvgpr_read_b32 v{OWN + 12 * e + i}, a{16 * (2 * kh + e) + i}")
                a(f"v_accvgpr_read_b32 v{PAR + 12 * e + i}, a{16 * (2 * (1 - kh) + e) + i}")
        if kh == 0:
            a(f"s_branch {Lj}")
    a.label(Lj)
    a("s_barrier")
    a(f"s_mul_i32 s{S_T + 2}, s{S_WAVE}, 6144")
    a(f"s_add_u32 s{S_T + 2}, s{S_T + 2}, {XCH}")
    a(f"v_lshl_add_u32 v{T + 1}, v{V_L}, 4, s{S_T + 2}")
    for i in range(6):
        a.lds(f"ds_write_b128 v{T + 1}, v[{PAR + 4 * i}:{PAR + 4 * i + 3}] offset:{1024 * i}", "x")
    a(f"s_xor_b32 s{S_T + 2}, s{S_WAVE}, 2")
    a(f"s_mul_i32 s{S_T + 2}, s{S_T + 2}, 6144")
    a(f"s_add_u32 s{S_T + 2}, s{S_T + 2}, {XCH}")
    a(f"v_lshl_add_u32 v{T + 1}, v{V_L}, 4, s{S_T + 2}")
    a.wait_lg()
    a("s_barrier")
    for i in range(6):
        a.lds(f"ds_read_b128 v[{PAR + 4 * i}:{PAR + 4 * i + 3}], v{T + 1} offset:{1024 * i}", "x")
    a.wait_lg()
    for i in range(0, 24, 2):
        a(f"v_pk_add_f32 v[{OWN + i}:{OWN + i + 1}], v[{OWN + i}:{OWN + i + 1}], v[{PAR + i}:{PAR + i + 1}]")
    LR = T + 4
    for e in range(2):
        a(f"v_mov_b32 v{T + 6}, v{OWN + 12 * e + 8}")
        a(f"v_mov_b32 v{LR + e}, v{OWN + 12 * e + 8}")
        a("s_nop 1")
        a(f"v_permlane32_swap_b32 v{T + 6}, v{LR + e}")
    if L_redo is not None:
        a(f"s_mov_b64 {sp(S_T + 4)}, 0")
        a(f"v_mov_b32 v{T + 8}, {fhex(2.0 ** -64)}")
        a(f"v_mov_b32 v{T + 9}, {fhex(2.0 ** 64)}")
        a(f"v_mov_b32 v{T + 10}, 0x207")
        for e in range(2):
            a(f"v_cmp_nge_f32 vcc, v{LR + e}, v{T + 8}")
            a(f"s_or_b64 {sp(S_T + 4)}, {sp(S_T + 4)}, vcc")
            a(f"v_cmp_nle_f32 vcc, v{LR + e}, v{T + 9}")
            a(f"s_or_b64 {sp(S_T + 4)}, {sp(S_T + 4)}, vcc")
            for i in range(8):
                a(f"v_cmp_class_f32 vcc, v{OWN + 12 * e + i}, v{T + 10}")
                a(f"s_or_b64 {sp(S_T + 4)}, {sp(S_T + 4)}, vcc")
            for i in range(8, 12):
                a(f"v_cmp_class_f32 vcc, v{OWN + 12 * e + i}, v{T + 10}")
                a(f"s_and_b64 vcc, vcc, {sp(S_LO32)}")
                a(f"s_or_b64 {sp(S_T + 4)}, {sp(S_T + 4)}, vcc")
        lab = a.newlabel("novote")
        a(f"s_cmp_eq_u64 {sp(S_T + 4)}, 0")
        a(f"s_cbranch_scc1 {lab}")
        a(f"v_mov_b32 v{T + 8}, {XFLAG}")
        a(f"v_mov_b32 v{T + 9}, 1")
        a(f"ds_write_b32 v{T + 8}, v{T + 9}")
        a.label(lab)
        a("s_waitcnt lgkmcnt(0)")
        a("s_barrier")
        a(f"v_mov_b32 v{T + 8}, {XFLAG}")
        a(f"ds_read_b32 v{T + 9}, v{T + 8}")
        a("s_waitcnt lgkmcnt(0)")
        a(f"v_readfirstlane_b32 s{S_T + 4}, v{T + 9}")
        a(f"s_cmp_lg_u32 s{S_T + 4}, 0")
        a(f"s_cbranch_scc1 {L_redo}")
    return T, OWN, LR


def store_o(a, T, OWN, LR):
    a.wait_vm("g")
    for e in range(2):
        a(f"v_rcp_f32 v{LR + e}, v{LR + e}")
    a("s_nop 0")
    for e in range(2):
        a(f"v_mul_f32 v{LR + e}, v{LR + e}, v{T + 2 + e}")
    a(f"v_lshrrev_b32 v{T + 8}, 4, v{V_TOK}")
    a(f"v_mul_u32_u24 v{T + 8}, 20480, v{T + 8}")
    a(f"v_and_b32 v{T + 9}, 15, v{V_TOK}")
    a(f"v_lshl_add_u32 v{T + 8}, v{T + 9}, 4, v{T + 8}")
    a(f"v_cmp_le_u32 vcc, 32, v{V_L}")
    a(f"s_mul_i32 s{S_T + 1}, s{S_T}, {2 * 20480}")
    a(f"s_add_u32 s{S_T + 1}, s{S_T + 1}, {WS_O}")
    a(f"s_mul_i32 s{S_T + 2}, s{S_HEAD}, 5")
    for m in range(3):
        for hh in range(2):
            d = S_T + 3 + hh
            a(f"s_add_u32 s{S_T + 5}, s{S_T + 2}, {2 * m + hh}")
            a(f"s_lshr_b32 s{d}, s{S_T + 5}, 3")
            a(f"s_lshl_b32 s{d}, s{d}, 10")
            a(f"s_and_b32 s{S_T + 6}, s{S_T + 5}, 3")
            a(f"s_lshl_b32 s{S_T + 6}, s{S_T + 6}, 8")
            a(f"s_add_u32 s{d}, s{d}, s{S_T + 6}")
            a(f"s_bfe_u32 s{S_T + 6}, s{S_T + 5}, 0x10002")
            a(f"s_lshl_b32 s{S_T + 6}, s{S_T + 6}, 3")
            a(f"s_add_u32 s{d}, s{d}, s{S_T + 6}")
        a(f"v_mov_b32 v{T + 10}, s{S_T + 3}")
        a(f"v_mov_b32 v{T + 11}, s{S_T + 4}")
        a(f"v_cndmask_b32 v{T + 10}, v{T + 10}, v{T + 11}, vcc")
        a(f"v_add_u32 v{T + 12 + m}, v{T + 10}, v{T + 8}")
    for e in range(2):
        for m in range(3):
            r = OWN + 12 * e + 4 * m
            P = T + 16 + 2 * ((3 * e + m) % 4)
            for i in range(4):
                a(f"v_mul_f32 v{r + i}, v{r + i}, v{LR + e}")
            a(f"v_cvt_pk_bf16_f32 v{P}, v{r}, v{r + 1}")
            a(f"v_cvt_pk_bf16_f32 v{P + 1}, v{r + 2}, v{r + 3}")
            if m == 2:
                a(f"s_mov_b64 exec, {sp(S_LO32)}")
            a(f"s_add_u32 s{S_T + 3}, s{S_T + 1}, {e * 2 * 20480}")
            a.vmem(f"buffer_store_dwordx2 v[{P}:{P + 1}], v{T + 12 + m}, {srd(SRD_WS)}, s{S_T + 3} offen sc1", "ost")
            if m == 2:
                a("s_mov_b64 exec, -1")


def max_to_negm(a):
    T = TMP
    for q in range(4):
        m = NEGM + 16 * q
        a(f"v_mov_b32 v{T}, v{m}")
        a("s_nop 1")
        a(f"v_permlane32_swap_b32 v{T}, v{m}")
        a(f"v_max_f32 v{m}, v{m}, v{T}")
    a("s_barrier")
    a(f"s_lshl_b32 s{S_T}, s{S_WAVE}, 10")
    a(f"s_add_u32 s{S_T}, s{S_T}, {XCH}")
    a(f"v_lshl_add_u32 v{T + 1}, v{V_L}, 2, s{S_T}")
    for q in range(4):
        a(f"ds_write_b32 v{T + 1}, v{NEGM + 16 * q} offset:{256 * q}")
    a(f"s_xor_b32 s{S_T}, s{S_WAVE}, 2")
    a(f"s_lshl_b32 s{S_T}, s{S_T}, 10")
    a(f"s_add_u32 s{S_T}, s{S_T}, {XCH}")
    a(f"v_lshl_add_u32 v{T + 1}, v{V_L}, 2, s{S_T}")
    a("s_waitcnt lgkmcnt(0)")
    a("s_barrier")
    for q in range(4):
        a(f"ds_read_b32 v{T + 2 + q}, v{T + 1} offset:{256 * q}")
    a("s_waitcnt lgkmcnt(0)")
    for q in range(4):
        m = NEGM + 16 * q
        a(f"v_max_f32 v{m}, v{m}, v{T + 2 + q}")
        a(f"v_sub_f32 v{m}, 0, v{m}")
        for i in range(1, 16):
            a(f"v_mov_b32 v{m + i}, v{m}")
    a("s_barrier")


def body_attn(a, with_fallback=True, ready=None, first_barrier=None, under_q=None, fillers=None):
    stamp(a, 8)
    setup(a)
    init_lds_consts(a)
    a(f"v_mov_b32 v{TMP + 12}, {XFLAG}")
    a(f"v_mov_b32 v{TMP + 13}, 0")
    a.lds(f"ds_write_b32 v{TMP + 12}, v{TMP + 13}", "ci")
    if ready:
        keep = list(a.lg)
        ready(a)
        a.lg = keep
    load_q(a)
    if under_q:
        under_q(a)
    a.wait_vm("q")
    a.wait_lg()
    stamp(a, 9)
    main_loop(a, "fast", first_barrier, unrolled=True, fillers=fillers)
    stamp(a, 11)
    L_redo = a.newlabel("redo") if with_fallback else None
    L_store = a.newlabel("ostore")
    T, OWN, LR = finish(a, L_redo)
    a.label(L_store)
    vm_state = list(a.vm)
    store_o(a, T, OWN, LR)
    if with_fallback:
        L_done = a.newlabel("attdone")
        a(f"s_branch {L_done}")
        a.label(L_redo)
        a("s_waitcnt vmcnt(0) lgkmcnt(0)")
        a.reset_counters()
        a("s_barrier")
        init_lds_consts(a)
        main_loop(a, "max")
        max_to_negm(a)
        main_loop(a, "safe")
        finish(a, None)
        a.vm = list(vm_state)
        a("s_waitcnt vmcnt(0)")
        a(f"s_branch {L_store}")
        a.label(L_done)


def kernel_attn(name):
    a = Asm()
    a.kname = name
    prologue(a)
    body_attn(a)
    a("s_waitcnt vmcnt(0)")
    stamp(a, 12)
    a("s_waitcnt vmcnt(0)")
    a.label("L_exit_" + name)
    a("s_endpgm")
    return kernel_header(name) + a.text(), kernel_desc(name, 512, 256)
```

```python
from common import *
from asmlib import Weaver
import math

LOG2E = 1.4426950408889634
QSCALE = LOG2E / math.sqrt(20.0)
GC1 = -2.0 * math.sqrt(2.0 / math.pi) * LOG2E
GC2 = GC1 * 0.044715

SLOT = 36864
WOFF = 16384
LDS_EXTRA = 150016

S_RB, S_CG, S_TH, S_CC = 46, 47, 48, 49
S_T0 = 50
S_WSTRIDE = 51
S_WCOL = 52
S_KX = 53
S_KW = 54
S_TMP = 55
S_W1 = 64
S_M2COL = 68
S_SCALE = 70
S_TYPEBASE = 72
S_C1, S_C2 = 74, 76
S_ONES = 78
S_MCOL = 79
S_ROT = 82

V_L, V_T16, V_G = 1, 2, 3
V_XD = 4
V_WD = 8
V_X0, V_X1, V_WE, V_WO = 13, 14, 15, 16
V_XA0, V_XA1, V_WAE, V_WAO = 17, 18, 19, 20
V_T = 21
ACC = 32
WB = 112
XV = 152
ET = 216


def xfrag(tb, s):
    p = tb * 20 + s
    if p < 64:
        return f"a[{4 * p}:{4 * p + 3}]"
    return f"v[{XV + 4 * (p - 64)}:{XV + 4 * (p - 64) + 3}]"


def acc(b, tb, n=4, off=0):
    return vr(ACC + 16 * b + 4 * tb + off, n)


def setup(a):
    T = V_T
    a(f"s_and_b32 s{S_TMP}, s{S_WG}, 7")
    a(f"s_lshr_b32 s{S_TMP + 1}, s{S_WG}, 3")
    a(f"s_lshr_b32 s{S_RB}, s{S_TMP}, 2")
    a(f"s_lshl_b32 s{S_RB}, s{S_RB}, 3")
    a(f"s_and_b32 s{S_TMP + 2}, s{S_TMP + 1}, 7")
    a(f"s_add_u32 s{S_RB}, s{S_RB}, s{S_TMP + 2}")
    a(f"s_and_b32 s{S_CG}, s{S_TMP}, 3")
    a(f"s_lshl_b32 s{S_CG}, s{S_CG}, 2")
    a(f"s_lshr_b32 s{S_TMP + 2}, s{S_TMP + 1}, 3")
    a(f"s_add_u32 s{S_CG}, s{S_CG}, s{S_TMP + 2}")
    a(f"s_lshr_b32 s{S_TMP + 2}, s{S_TMP + 1}, 3")
    a(f"s_mul_i32 s{S_ROT}, s{S_TMP + 2}, 5")
    a(f"s_lshr_b32 s{S_ROT}, s{S_ROT}, 1")
    a(f"s_and_b32 s{S_TMP + 2}, s{S_TMP + 1}, 7")
    a(f"s_add_u32 s{S_ROT}, s{S_ROT}, s{S_TMP + 2}")
    a(f"s_cmp_ge_u32 s{S_ROT}, 10")
    a(f"s_cselect_b32 s{S_TMP + 2}, 10, 0")
    a(f"s_sub_u32 s{S_ROT}, s{S_ROT}, s{S_TMP + 2}")
    a(f"s_and_b32 s{S_TH}, s{S_WAVE}, 1")
    a(f"s_lshr_b32 s{S_CC}, s{S_WAVE}, 1")
    a(f"s_lshl_b32 s{S_T0}, s{S_RB}, 7")
    a(f"s_cmp_lt_u32 s{S_CG}, 12")
    a(f"s_movk_i32 s{S_WSTRIDE}, 3072")
    a(f"s_cselect_b32 s{S_WSTRIDE}, 3840, s{S_WSTRIDE}")
    a(f"s_cselect_b32 s{S_W1}, s{SRD_WQKV}, s{SRD_W1}")
    a(f"s_cselect_b32 s{S_W1 + 1}, s{SRD_WQKV + 1}, s{SRD_W1 + 1}")
    a(f"s_cselect_b32 s{S_W1 + 2}, s{SRD_WQKV + 2}, s{SRD_W1 + 2}")
    a(f"s_mov_b32 s{S_W1 + 3}, 0x00020000")
    a(f"s_mul_i32 s{S_TMP}, s{S_CG}, 160")
    a(f"s_sub_u32 s{S_TMP + 1}, s{S_CG}, 12")
    a(f"s_mul_i32 s{S_TMP + 1}, s{S_TMP + 1}, 192")
    a(f"s_add_u32 s{S_TMP + 1}, s{S_TMP + 1}, 768")
    a(f"s_cmp_lt_u32 s{S_CG}, 12")
    a(f"s_cselect_b32 s{S_WCOL}, s{S_TMP}, s{S_TMP + 1}")
    a(f"s_lshl_b32 s{S_TMP}, s{S_CG}, 6")
    a(f"s_add_u32 s{S_TMP + 1}, s{S_TMP + 1}, 160")
    a(f"s_cmp_lt_u32 s{S_CG}, 12")
    a(f"s_cselect_b32 s{S_M2COL}, s{S_TMP}, s{S_TMP + 1}")
    a(f"v_and_b32 v{V_L}, 63, v0")
    a(f"v_and_b32 v{V_T16}, 15, v0")
    a(f"v_lshrrev_b32 v{V_G}, 4, v{V_L}")
    a(f"s_lshl_b32 s{S_TMP}, s{S_WAVE}, 5")
    a(f"s_add_u32 s{S_TMP}, s{S_TMP}, s{S_T0}")
    a(f"v_lshrrev_b32 v{T}, 3, v{V_L}")
    a(f"v_add_u32 v{T}, s{S_TMP}, v{T}")
    a(f"s_movk_i32 s{S_TMP + 1}, 1280")
    a(f"v_mul_lo_u32 v{T}, v{T}, s{S_TMP + 1}")
    a(f"v_and_b32 v{T + 1}, 7, v{V_L}")
    a(f"v_xor_b32 v{T + 1}, v{T + 1}, v{V_G}")
    a(f"v_lshlrev_b32 v{T + 2}, 4, v{T + 1}")
    a(f"v_xor_b32 v{T + 3}, 64, v{T + 2}")
    for n in range(4):
        a(f"v_add_u32 v{V_XD + n}, v{T}, v{T + 2 + (n & 1)}")
        if n:
            a(f"v_add_u32 v{V_XD + n}, {n * (8 * 1280 - 1024)}, v{V_XD + n}")
    a(f"s_mul_i32 s{S_TMP}, s{S_WAVE}, 320")
    for n in range(5):
        a(f"v_add_u32 v{T}, s{S_TMP}, v{V_L}")
        if n:
            a(f"v_add_u32 v{T}, {64 * n}, v{T}")
        a(f"v_mul_u32_u24 v{T + 1}, 3277, v{T}")
        a(f"v_lshrrev_b32 v{T + 1}, 16, v{T + 1}")
        a(f"v_mul_u32_u24 v{T + 2}, 20, v{T + 1}")
        a(f"v_sub_u32 v{T + 2}, v{T}, v{T + 2}")
        a(f"v_bfe_u32 v{T + 3}, v{T + 1}, 3, 1")
        a(f"v_lshlrev_b32 v{T + 3}, 1, v{T + 3}")
        a(f"v_xor_b32 v{T + 2}, v{T + 2}, v{T + 3}")
        a(f"v_lshlrev_b32 v{T + 2}, 4, v{T + 2}")
        a(f"v_mul_lo_u32 v{T + 1}, v{T + 1}, s{S_WSTRIDE}")
        a(f"v_add_u32 v{V_WD + n}, v{T + 1}, v{T + 2}")
        if 0 < n < 4:
            a(f"v_subrev_u32 v{V_WD + n}, {1024 * n}, v{V_WD + n}")
    a(f"s_lshl_b32 s{S_TMP}, s{S_TH}, 6")
    a(f"v_add_u32 v{T}, s{S_TMP}, v{V_T16}")
    a(f"v_lshlrev_b32 v{T}, 7, v{T}")
    a(f"v_lshrrev_b32 v{T + 1}, 1, v{V_T16}")
    a(f"v_xor_b32 v{T + 1}, v{T + 1}, v{V_G}")
    a(f"v_lshl_add_u32 v{V_X0}, v{T + 1}, 4, v{T}")
    a(f"v_xor_b32 v{V_X1}, 64, v{V_X0}")
    a(f"v_lshrrev_b32 v{T}, 2, v{V_T16}")
    a(f"v_lshl_add_u32 v{T}, v{V_G}, 3, v{T}")
    a(f"v_mul_u32_u24 v{T}, 320, v{T}")
    a(f"v_and_b32 v{T + 1}, 3, v{V_T16}")
    a(f"v_lshl_add_u32 v{T}, v{T + 1}, 3, v{T}")
    a(f"s_mul_i32 s{S_TMP}, s{S_CC}, 160")
    a(f"s_add_u32 s{S_TMP}, s{S_TMP}, {WOFF}")
    a(f"v_add_u32 v{T}, s{S_TMP}, v{T}")
    a(f"v_and_b32 v{T + 1}, 1, v{V_G}")
    a(f"v_lshlrev_b32 v{T + 1}, 5, v{T + 1}")
    a(f"v_add_u32 v{T + 2}, v{T}, v{T + 1}")
    a(f"v_sub_u32 v{T + 3}, v{T}, v{T + 1}")
    a(f"s_cmp_eq_u32 s{S_CC}, 0")
    a(f"s_cselect_b64 vcc, -1, 0")
    a(f"v_cndmask_b32 v{V_WE}, v{T + 3}, v{T + 2}, vcc")
    a(f"v_cndmask_b32 v{V_WO}, v{T + 2}, v{T + 3}, vcc")
    a(f"s_mov_b32 s{S_ONES}, 0x3f803f80")


S_XO, S_WO, S_M0X, S_M0W, S_W64, S_WWRAP = 53, 54, 83, 69, 73, 76


def dma_setup(a):
    a(f"s_lshl_b32 s{S_XO}, s{S_ROT}, 7")
    a(f"s_lshl_b32 s{S_W64}, s{S_WSTRIDE}, 6")
    a(f"s_mul_i32 s{S_WO}, s{S_ROT}, s{S_W64}")
    a(f"s_lshl_b32 s{S_TMP}, s{S_WCOL}, 1")
    a(f"s_add_u32 s{S_WO}, s{S_WO}, s{S_TMP}")
    a(f"s_mul_i32 s{S_WWRAP}, s{S_W64}, 10")
    a(f"s_lshl_b32 s{S_M0X}, s{S_WAVE}, 12")
    a(f"s_mul_i32 s{S_M0W}, s{S_WAVE}, 5120")
    a(f"s_add_u32 s{S_M0W}, s{S_M0W}, {WOFF}")


def dma_chunk_list(c):
    slot = (c % 4) * SLOT
    L = []
    for n in range(4):
        pre = [f"s_add_u32 m0, s{S_M0X}, {slot}"] if n == 0 else []
        L.append((pre, f"buffer_load_dwordx4 v{V_XD + n}, {srd(SRD_X)}, s{S_XO} offen offset:{1024 * n} lds"))
    for n in range(5):
        pre = []
        if n == 0:
            pre = [f"s_add_u32 m0, s{S_M0W}, {slot}"]
        if n == 4:
            pre = [f"s_add_u32 m0, s{S_M0W}, {slot + 4096}"]
        off = 1024 * n if n < 4 else 0
        L.append((pre, f"buffer_load_dwordx4 v{V_WD + n}, {srd(S_W1)}, s{S_WO} offen offset:{off} lds"))
    return L


def dma_advance():
    return [f"s_add_u32 s{S_XO}, s{S_XO}, 128", f"s_add_u32 s{S_WO}, s{S_WO}, s{S_W64}",
            f"s_cmp_ge_u32 s{S_XO}, 1280\ns_cselect_b32 s{S_TMP}, 1280, 0\ns_cselect_b32 s{S_TMP + 1}, s{S_WWRAP}, 0",
            f"s_sub_u32 s{S_XO}, s{S_XO}, s{S_TMP}", f"s_sub_u32 s{S_WO}, s{S_WO}, s{S_TMP + 1}"]


V_MD = 21
V_MR = 25
V_MA = 27


def m2_setup(a, nb):
    T = ET
    rowb = 64 * nb
    if nb == 2:
        a(f"v_lshrrev_b32 v{T}, 3, v{V_L}")
        a(f"v_bfe_u32 v{T + 1}, v{V_L}, 4, 1")
        a(f"v_lshlrev_b32 v{T + 1}, 1, v{T + 1}")
        a(f"v_and_b32 v{T + 2}, 7, v{V_L}")
        a(f"v_xor_b32 v{T + 2}, v{T + 2}, v{T + 1}")
        a(f"v_lshlrev_b32 v{T + 2}, 4, v{T + 2}")
        a(f"v_xor_b32 v{T + 3}, 64, v{T + 2}")
        a(f"v_mul_u32_u24 v{T}, 3072, v{T}")
        for n in range(4):
            a(f"v_add_u32 v{V_MD + n}, v{T}, v{T + 2 + (n & 1)}")
            if n:
                a(f"v_add_u32 v{V_MD + n}, {n * (8 * 3072 - 1024)}, v{V_MD + n}")
        a(f"v_lshrrev_b32 v{T}, 2, v{V_T16}")
        a(f"v_lshl_add_u32 v{T}, v{V_G}, 3, v{T}")
        a(f"v_lshlrev_b32 v{T}, 7, v{T}")
        a(f"v_and_b32 v{T + 1}, 3, v{V_T16}")
        a(f"v_lshl_add_u32 v{T}, v{T + 1}, 3, v{T}")
        a(f"v_bfe_u32 v{T + 1}, v{V_T16}, 3, 1")
        a(f"v_and_b32 v{T + 2}, 1, v{V_G}")
        a(f"v_lshl_or_b32 v{T + 1}, v{T + 2}, 1, v{T + 1}")
        a(f"s_lshl_b32 s{S_TMP}, s{S_CC}, 1")
        for b in range(2):
            a(f"s_add_u32 s{S_TMP + 1}, s{S_TMP}, {b}")
            a(f"v_xor_b32 v{T + 2}, s{S_TMP + 1}, v{T + 1}")
            a(f"v_lshl_add_u32 v{V_MR + b}, v{T + 2}, 5, v{T}")
    else:
        a(f"v_lshrrev_b32 v{T}, 2, v{V_L}")
        a(f"v_lshrrev_b32 v{T + 1}, 5, v{V_L}")
        a(f"v_lshlrev_b32 v{T + 1}, 1, v{T + 1}")
        a(f"v_and_b32 v{T + 2}, 3, v{V_L}")
        a(f"v_xor_b32 v{T + 2}, v{T + 2}, v{T + 1}")
        a(f"v_lshlrev_b32 v{T + 2}, 4, v{T + 2}")
        a(f"v_mul_u32_u24 v{T}, 3072, v{T}")
        a(f"v_add_u32 v{V_MD}, v{T}, v{T + 2}")
        for n in range(1, 4):
            a(f"v_add_u32 v{V_MD + n}, {n * (16 * 3072 - 1024)}, v{V_MD}")
        a(f"v_lshrrev_b32 v{T}, 2, v{V_T16}")
        a(f"v_lshl_add_u32 v{T}, v{V_G}, 3, v{T}")
        a(f"v_lshlrev_b32 v{T}, 6, v{T}")
        a(f"v_and_b32 v{T + 1}, 3, v{V_T16}")
        a(f"v_lshl_add_u32 v{T}, v{T + 1}, 3, v{T}")
        a(f"v_and_b32 v{T + 2}, 1, v{V_G}")
        a(f"v_xor_b32 v{T + 2}, s{S_CC}, v{T + 2}")
        a(f"v_lshl_add_u32 v{V_MR}, v{T + 2}, 5, v{T}")


def m2_layout(nb):
    if nb == 2:
        return [(2, 0, 256), (3, 256, 256), (0, 512, 128)]
    return [(2, 0, 512), (3, 512, 128)]


def m2_dma_list(nb, vi):
    slot, k0, nrows = m2_layout(nb)[vi]
    rowb = 64 * nb
    nins = nrows * rowb // 1024
    per = nins // 4
    rows_per_ins = 1024 // rowb
    L = []
    for n in range(per):
        pre = None
        if n % 4 == 0:
            pre = [f"s_mul_i32 s{S_TMP}, s{S_WAVE}, {per * 1024}",
                   f"s_add_u32 m0, s{S_TMP}, {slot * SLOT + 1024 * n}",
                   f"s_mul_i32 s{S_TMP + 1}, s{S_WAVE}, {per * rows_per_ins}",
                   f"s_add_u32 s{S_TMP + 1}, s{S_TMP + 1}, {k0 + n * rows_per_ins}",
                   f"s_lshr_b32 s{S_TMP + 2}, s{S_TMP + 1}, 6",
                   f"s_and_b32 s{S_TMP + 1}, s{S_TMP + 1}, 63",
                   f"s_add_u32 s{S_TMP + 2}, s{S_TMP + 2}, s{S_ROT}",
                   f"s_cmp_ge_u32 s{S_TMP + 2}, 10\ns_cselect_b32 s{S_TMP + 3}, 10, 0",
                   f"s_sub_u32 s{S_TMP + 2}, s{S_TMP + 2}, s{S_TMP + 3}",
                   f"s_lshl_b32 s{S_TMP + 2}, s{S_TMP + 2}, 6",
                   f"s_add_u32 s{S_TMP + 1}, s{S_TMP + 1}, s{S_TMP + 2}",
                   f"s_mul_i32 s{S_TMP + 1}, s{S_TMP + 1}, 3072",
                   f"s_lshl_b32 s{S_TMP + 2}, s{S_M2COL}, 1",
                   f"s_add_u32 s{S_TMP + 1}, s{S_TMP + 1}, s{S_TMP + 2}"]
        nn = n % 4
        if per % 2 == 1 or (nb == 2 and (per * 1) % 2 == 1):
            raise AssertionError("parity")
        L.append((pre, f"buffer_load_dwordx4 v{V_MD + nn}, {srd(SRD_W1)}, s{S_TMP + 1} offen offset:{1024 * nn} lds"))
    return L


def emit_dma(a, item, tag):
    pre, ins = item
    for p in (pre or []):
        a(p)
    if pre and "m0" in pre[-1]:
        a("s_nop 0")
    a.vmem(ins, tag)


def first_pass(a, orient, do_cs, nb2, hooks=None):
    hooks = hooks or {}
    dma_setup(a)
    for c in range(2):
        for it in dma_chunk_list(c):
            emit_dma(a, it, ("dma", c))
        for ins in dma_advance():
            a(ins)
    if "start" in hooks:
        hooks["start"](a)
    for lo, hi in ((V_X0, V_XA0), (V_X1, V_XA1), (V_WE, V_WAE), (V_WO, V_WAO)):
        a(f"v_add_u32 v{hi}, {2 * SLOT}, v{lo}")

    def reads(s):
        c, sl = s // 2, s % 2
        hi = (c % 4) >= 2
        so = (c % 2) * SLOT
        wb = WB + 20 * (s % 2)

        def wr(b, rd):
            base = ((V_WAE, V_WAO) if hi else (V_WE, V_WO))[b % 2]
            return f"ds_read_b64_tr_b16 v[{wb + 4 * b + 2 * rd}:{wb + 4 * b + 2 * rd + 1}], v{base} offset:{so + 10240 * sl + 1280 * rd + 32 * b}"

        def xr(tb):
            base = ((V_XA0, V_XA1) if hi else (V_X0, V_X1))[sl]
            return f"ds_read_b128 {xfrag(tb, s)}, v{base} offset:{so + 2048 * tb}"
        return [wr(0, 0), wr(0, 1)] + [xr(tb) for tb in range(4)] + [wr(b, rd) for b in range(1, 5) for rd in range(2)]

    if do_cs:
        for b in range(5):
            a(f"v_mov_b32 v{V_CS + b}, 0")
    stamp(a, 19)
    a.wait_vm(("dma", 0))
    a("s_barrier")
    stamp(a, 20)
    for r in reads(0):
        a.lds(r, ("rd", 0))

    W = Weaver(a, cap=2)
    qr, qd = W.queue(), W.queue()
    pos = 0

    def add_item(it, tag, p):
        pre, ins = it
        pre = pre or []
        for k, x in enumerate(pre):
            qd.append((max(p - (len(pre) - k + 1) // 2, 0), (lambda x=x: a(x)), 1 + x.count("\n")))
        if pre and "m0" in pre[-1]:
            qd.append((max(p - 1, 0), (lambda: a("s_nop 0")), 1))
        qd.append((p, (lambda ins=ins, tag=tag: a.vmem(ins, tag)), 1))

    for c in range(2, 10):
        pos = max(pos, 40 * (c - 3) - 20 + 1)
        for it in dma_chunk_list(c):
            add_item(it, ("dma", c), pos)
            pos += 4
        if c < 9:
            for k, ins in enumerate(dma_advance()):
                qd.append((pos - 3, (lambda ins=ins: a(ins)), 1))
    for vi in range(len(m2_layout(nb2))):
        pos = max(pos, 40 * (7 + vi) - 20 + 1)
        for it in m2_dma_list(nb2, vi):
            add_item(it, ("m2", vi), pos)
            pos += 4
    for s in range(20):
        a.wait_lg(("rd", s))
        if s % 2 == 1 and s < 19:
            c = (s + 1) // 2
            a.wait_vm(("dma", c))
            a("s_barrier")
            if "chunk" in hooks:
                hooks["chunk"](a, c)
            if FINE:
                stamp(a, 20 + c)
        if s < 19:
            for k, r in enumerate(reads(s + 1)):
                qr.append((20 * s + k, (lambda r=r, s=s: a.lds(r, ("rd", s + 1))), 1))
        wb = WB + 20 * (s % 2)
        for b in range(5):
            for tb in range(4):
                wf = f"v[{wb + 4 * b}:{wb + 4 * b + 3}]"
                cin = acc(b, tb) if s > 0 else "0"
                if orient == "T":
                    W.step(f"v_mfma_f32_16x16x32_bf16 {acc(b, tb)}, {wf}, {xfrag(tb, s)}, {cin}")
                else:
                    W.step(f"v_mfma_f32_16x16x32_bf16 {acc(b, tb)}, {xfrag(tb, s)}, {wf}, {cin}")
        W.flush(qr)
        if do_cs:
            lab = a.newlabel("cs")
            a(f"s_cmp_lg_u32 s{S_TH}, {s % 2}")
            a(f"s_cbranch_scc1 {lab}")
            for j in range(4):
                for b in range(5):
                    a(f"v_dot2_f32_bf16 v{V_CS + b}, v{wb + 4 * b + j}, s{S_ONES}, v{V_CS + b}")
            a.label(lab)
    W.flush()


FINE = False
V_CS = ET + 32


def second_pass(a, nb):
    lay = m2_layout(nb)
    rowb = 64 * nb

    def where(s):
        k = 32 * s
        for vi, (slot, k0, nrows) in enumerate(lay):
            if k0 <= k < k0 + nrows:
                return vi, slot, (k - k0) * rowb
        raise AssertionError

    def reads(s):
        vi, slot, off = where(s)
        wb = WB + 8 * (s % 3)
        R = []
        for b in range(nb):
            for rd in range(2):
                R.append(f"ds_read_b64_tr_b16 v[{wb + 4 * b + 2 * rd}:{wb + 4 * b + 2 * rd + 1}], v{V_MA + b} offset:{off + rd * 4 * rowb}")
        return R

    cur_slot = [None]

    def set_slot(s):
        vi, slot, off = where(s)
        if cur_slot[0] != slot:
            cur_slot[0] = slot
            for b in range(nb):
                a(f"v_add_u32 v{V_MA + b}, {slot * SLOT}, v{V_MR + b}")

    for i in range(16 * nb):
        a(f"v_mov_b32 v{ACC + i}, 0")
    for b in range(nb):
        a(f"v_mov_b32 v{V_CS + b}, 0")
    a.wait_vm([("m2", vi) for vi in range(len(lay))])
    a("s_barrier")
    for s0 in range(2):
        set_slot(s0)
        for r in reads(s0):
            a.lds(r, ("rd2", s0))
    for s in range(20):
        a.wait_lg(("rd2", s))
        R = []
        if s + 2 < 20:
            set_slot(s + 2)
            R = reads(s + 2)
        wb = WB + 8 * (s % 3)
        m = 0
        for b in range(nb):
            for tb in range(4):
                a(f"v_mfma_f32_16x16x32_bf16 {vr(ACC + 16 * b + 4 * tb, 4)}, v[{wb + 4 * b}:{wb + 4 * b + 3}], {xfrag(tb, s)}, {vr(ACC + 16 * b + 4 * tb, 4)}")
                if m < len(R):
                    a.lds(R[m], ("rd2", s + 2))
                m += 1
        lab = a.newlabel("cs2")
        a(f"s_cmp_lg_u32 s{S_TH}, {s % 2}")
        a(f"s_cbranch_scc1 {lab}")
        for j in range(4):
            for b in range(nb):
                a(f"v_dot2_f32_bf16 v{V_CS + b}, v{wb + 4 * b + j}, s{S_ONES}, v{V_CS + b}")
        a.label(lab)


def epilogue_qk(a):
    T = ET
    a(f"s_cmp_lt_u32 s{S_CG}, 4")
    a(f"s_cselect_b32 s{S_SCALE}, {fhex(QSCALE)}, 1.0")
    a(f"s_mov_b32 s{S_SCALE + 1}, s{S_SCALE}")
    a(f"s_mov_b32 s{S_TYPEBASE}, {WS_KLO}")
    a(f"s_cselect_b32 s{S_TYPEBASE}, {WS_QLO}, s{S_TYPEBASE}")
    a(f"s_and_b32 s{S_TMP}, s{S_CG}, 3")
    a(f"s_lshl_b32 s{S_TMP}, s{S_TMP}, 2")
    a(f"s_lshl_b32 s{S_TMP + 1}, s{S_CC}, 1")
    a(f"s_add_u32 s{S_TMP}, s{S_TMP}, s{S_TMP + 1}")
    a(f"s_lshl_b32 s{S_TMP + 1}, s{S_RB}, 2")
    a(f"s_lshl_b32 s{S_TMP + 2}, s{S_TH}, 1")
    a(f"s_add_u32 s{S_TMP + 1}, s{S_TMP + 1}, s{S_TMP + 2}")
    a(f"v_and_b32 v{T}, 1, v{V_G}")
    a(f"v_lshl_add_u32 v{T}, v{T}, 4, v{V_T16}")
    a(f"v_lshlrev_b32 v{T}, 4, v{T}")
    a(f"v_cmp_le_u32 vcc, 2, v{V_G}")
    a("s_nop 4")

    def oct_addr(o, tau, dst):
        ip, oo = o // 5, o % 5
        if oo == 2:
            a(f"s_add_u32 s{dst}, s{S_TMP}, {ip}")
            a(f"s_lshl_b32 s{dst}, s{dst}, 15")
            a(f"s_add_u32 s{S_TMP + 6}, s{S_TMP + 1}, {tau}")
            a(f"s_lshl_b32 s{S_TMP + 6}, s{S_TMP + 6}, 9")
            a(f"s_add_u32 s{dst}, s{dst}, s{S_TMP + 6}")
            a(f"s_add_u32 s{dst}, s{dst}, 0x200000")
        else:
            hsel = 0 if oo < 2 else 1
            half = oo if oo < 2 else oo - 3
            a(f"s_add_u32 s{dst}, s{S_TMP}, {ip}")
            a(f"s_lshl_b32 s{dst}, s{dst}, 1")
            a(f"s_add_u32 s{dst}, s{dst}, {hsel}")
            a(f"s_lshl_b32 s{dst}, s{dst}, 16")
            a(f"s_add_u32 s{S_TMP + 6}, s{S_TMP + 1}, {tau}")
            a(f"s_lshl_b32 s{S_TMP + 6}, s{S_TMP + 6}, 10")
            a(f"s_add_u32 s{dst}, s{dst}, s{S_TMP + 6}")
            if half:
                a(f"s_add_u32 s{dst}, s{dst}, 512")

    a("s_nop 7")
    k = 0
    for b in range(5):
        for tau in range(2):
            P = T + 4 + 8 * (k % 3)
            AD = P + 4
            k += 1
            for t2 in range(2):
                tb = 2 * tau + t2
                r = ACC + 16 * b + 4 * tb
                a(f"v_pk_mul_f32 v[{r}:{r + 1}], v[{r}:{r + 1}], {sp(S_SCALE)}")
                a(f"v_pk_mul_f32 v[{r + 2}:{r + 3}], v[{r + 2}:{r + 3}], {sp(S_SCALE)}")
                a(f"v_cvt_pk_bf16_f32 v{P + 2 * t2}, v{r}, v{r + 1}")
                a(f"v_cvt_pk_bf16_f32 v{P + 2 * t2 + 1}, v{r + 2}, v{r + 3}")
            oct_addr(2 * b, tau, S_TMP + 3)
            oct_addr(2 * b + 1, tau, S_TMP + 4)
            a(f"v_mov_b32 v{AD}, s{S_TMP + 3}")
            a(f"v_mov_b32 v{AD + 1}, s{S_TMP + 4}")
            a(f"v_permlane16_swap_b32 v{P}, v{P + 2}")
            a(f"v_permlane16_swap_b32 v{P + 1}, v{P + 3}")
            a(f"v_cndmask_b32 v{AD}, v{AD}, v{AD + 1}, vcc")
            a(f"v_add_u32 v{AD}, v{AD}, v{T}")
            a.vmem(f"buffer_store_dwordx4 v[{P}:{P + 3}], v{AD}, {srd(SRD_WS)}, s{S_TYPEBASE} offen sc1", "st1")


def epilogue_v(a):
    T = ET
    a(f"s_sub_u32 s{S_TMP}, s{S_CG}, 8")
    a(f"s_lshl_b32 s{S_TMP}, s{S_TMP}, 3")
    a(f"s_mul_i32 s{S_TMP}, s{S_TMP}, 81920")
    a(f"s_lshl_b32 s{S_TMP + 1}, s{S_RB}, 2")
    a(f"s_lshl_b32 s{S_TMP + 2}, s{S_TH}, 1")
    a(f"s_add_u32 s{S_TMP + 1}, s{S_TMP + 1}, s{S_TMP + 2}")
    a(f"s_mul_i32 s{S_TMP + 1}, s{S_TMP + 1}, 1280")
    a(f"s_add_u32 s{S_TMP}, s{S_TMP}, s{S_TMP + 1}")
    a(f"s_add_u32 s{S_TYPEBASE}, s{S_TMP}, {WS_V}")
    a(f"v_lshrrev_b32 v{T}, 1, v{V_G}")
    a(f"v_mul_u32_u24 v{T}, 640, v{T}")
    a(f"v_and_b32 v{T + 1}, 1, v{V_G}")
    a(f"v_mul_u32_u24 v{T + 1}, 320, v{T + 1}")
    a(f"v_add_u32 v{T}, v{T}, v{T + 1}")
    a(f"s_mul_i32 s{S_TMP + 2}, s{S_CC}, 80")
    a(f"s_mov_b32 s{S_TMP + 3}, 81920")
    a("s_nop 7")
    k = 0
    for b in range(5):
        AD = T + 2
        a(f"v_add_u32 v{AD}, s{S_TMP + 2}, v{V_T16}")
        if b:
            a(f"v_add_u32 v{AD}, {16 * b}, v{AD}")
        a(f"v_mul_u32_u24 v{AD + 1}, 3277, v{AD}")
        a(f"v_lshrrev_b32 v{AD + 1}, 16, v{AD + 1}")
        a(f"v_mul_u32_u24 v{AD + 2}, 20, v{AD + 1}")
        a(f"v_sub_u32 v{AD}, v{AD}, v{AD + 2}")
        a(f"v_lshlrev_b32 v{AD}, 4, v{AD}")
        a(f"v_mul_lo_u32 v{AD + 1}, v{AD + 1}, s{S_TMP + 3}")
        a(f"v_add3_u32 v{AD + 4 + b}, v{AD}, v{AD + 1}, v{T}")
    for b in range(5):
        for tau in range(2):
            P = T + 12 + 4 * (k % 4)
            k += 1
            for t2 in range(2):
                tb = 2 * tau + t2
                r = ACC + 16 * b + 4 * tb
                a(f"v_cvt_pk_bf16_f32 v{P + 2 * t2}, v{r}, v{r + 1}")
                a(f"v_cvt_pk_bf16_f32 v{P + 2 * t2 + 1}, v{r + 2}, v{r + 3}")
            a("s_nop 1")
            a(f"v_permlane32_swap_b32 v{P}, v{P + 2}")
            a(f"v_permlane32_swap_b32 v{P + 1}, v{P + 3}")
            a.vmem(f"buffer_store_dwordx4 v[{P}:{P + 3}], v{T + 6 + b}, {srd(SRD_WS)}, s{S_TYPEBASE} offen offset:{1280 * tau} sc1", "st1")


def epilogue_mlp(a, nb, x4):
    T = ET
    ST = WB
    B1 = WB + 16
    CSQ = WB + 28
    BQ = WB + 32
    a(f"s_lshl_b32 s{S_TMP}, s{S_TH}, 6")
    a(f"s_add_u32 s{S_TMP}, s{S_TMP}, s{S_T0}")
    a(f"v_add_u32 v{T}, s{S_TMP}, v{V_T16}")
    a(f"v_lshlrev_b32 v{T}, 4, v{T}")
    for tb in range(4):
        a.vmem(f"buffer_load_dwordx4 v[{ST + 4 * tb}:{ST + 4 * tb + 3}], v{T}, {srd(SRD_WS)}, 0 offen offset:{WS_STATS + 256 * tb} sc1", "stats")
    a(f"v_lshlrev_b32 v{T + 1}, 3, v{V_G}")
    a(f"s_lshl_b32 s{S_TMP + 1}, s{S_MCOL}, 1")
    a(f"v_add_u32 v{T + 1}, s{S_TMP + 1}, v{T + 1}")
    for b in range(nb):
        a.vmem(f"global_load_dwordx2 v[{B1 + 2 * b}:{B1 + 2 * b + 1}], v{T + 1}, {sp(S_B1)} offset:{32 * b}", "b1")
    a("s_nop 2")
    for b in range(nb):
        c = V_CS + b
        a(f"v_mov_b32 v{T + 2}, v{c}")
        a("s_nop 1")
        a(f"v_permlane32_swap_b32 v{T + 2}, v{c}")
        a(f"v_add_f32 v{c}, v{c}, v{T + 2}")
        a(f"v_mov_b32 v{T + 2}, v{c}")
        a("s_nop 1")
        a(f"v_permlane16_swap_b32 v{T + 2}, v{c}")
        a(f"v_add_f32 v{c}, v{c}, v{T + 2}")
    a(f"s_mul_i32 s{S_TMP}, s{S_WAVE}, 320")
    a(f"s_add_u32 s{S_TMP}, s{S_TMP}, {LDS_EXTRA}")
    a(f"v_lshl_add_u32 v{T + 2}, v{V_T16}, 2, s{S_TMP}")
    for b in range(nb):
        a.lds(f"ds_write_b32 v{T + 2}, v{V_CS + b} offset:{64 * b}", "csw")
    a.wait_lg()
    a("s_barrier")
    a(f"s_mul_i32 s{S_TMP}, s{S_CC}, 640")
    a(f"s_add_u32 s{S_TMP}, s{S_TMP}, {LDS_EXTRA}")
    a(f"v_lshl_add_u32 v{T + 2}, v{V_G}, 4, s{S_TMP}")
    VC1, VC2 = T + 28, T + 30
    a(f"v_mov_b32 v{VC1}, {fhex(GC1)}")
    a(f"v_mov_b32 v{VC1 + 1}, {fhex(GC1)}")
    a(f"v_mov_b32 v{VC2}, {fhex(GC2)}")
    a(f"v_mov_b32 v{VC2 + 1}, {fhex(GC2)}")
    a(f"s_mov_b32 s{S_C1}, 1.0")
    a(f"s_mov_b32 s{S_C1 + 1}, 1.0")
    a(f"s_lshr_b32 s{S_TMP + 1}, s{S_T0}, 4")
    a(f"s_lshl_b32 s{S_TMP + 2}, s{S_TH}, 2")
    a(f"s_add_u32 s{S_TMP + 1}, s{S_TMP + 1}, s{S_TMP + 2}")
    a(f"s_mul_i32 s{S_TMP + 1}, s{S_TMP + 1}, {48 * 1024}")
    a(f"s_add_u32 s{S_TYPEBASE}, s{S_TMP + 1}, {WS_H}")
    a(f"v_lshlrev_b32 v{T + 3}, 4, v{V_L}")
    a.wait_vm(["stats", "b1"])
    PK = T + 8
    G1, G2 = T + 24, T + 28
    for b in range(nb):
        a.lds(f"ds_read_b128 v[{CSQ}:{CSQ + 3}], v{T + 2} offset:{64 * b}", "csr")
        a.lds(f"ds_read_b128 v[{G1}:{G1 + 3}], v{T + 2} offset:{320 + 64 * b}", "csr")
        a(f"v_lshlrev_b32 v{BQ}, 16, v{B1 + 2 * b}")
        a(f"v_and_b32 v{BQ + 1}, 0xffff0000, v{B1 + 2 * b}")
        a(f"v_lshlrev_b32 v{BQ + 2}, 16, v{B1 + 2 * b + 1}")
        a(f"v_and_b32 v{BQ + 3}, 0xffff0000, v{B1 + 2 * b + 1}")
        a.wait_lg("csr")
        a(f"v_pk_add_f32 v[{CSQ}:{CSQ + 1}], v[{CSQ}:{CSQ + 1}], v[{G1}:{G1 + 1}]")
        a(f"v_pk_add_f32 v[{CSQ + 2}:{CSQ + 3}], v[{CSQ + 2}:{CSQ + 3}], v[{G1 + 2}:{G1 + 3}]")
        for tb in range(4):
            r = ACC + 16 * b + 4 * tb
            st = ST + 4 * tb
            for h2 in range(2):
                x = f"v[{r + 2 * h2}:{r + 2 * h2 + 1}]"
                g1 = f"v[{G1 + 2 * h2}:{G1 + 2 * h2 + 1}]"
                a(f"v_pk_fma_f32 {x}, v[{CSQ + 2 * h2}:{CSQ + 2 * h2 + 1}], v[{st}:{st + 1}], {x} op_sel_hi:[1,0,1] neg_lo:[1,0,0] neg_hi:[1,0,0]")
                a(f"v_pk_fma_f32 {x}, {x}, v[{st}:{st + 1}], v[{BQ + 2 * h2}:{BQ + 2 * h2 + 1}] op_sel:[0,1,0] op_sel_hi:[1,1,1]")
                a(f"v_pk_mul_f32 {g1}, {x}, {x}")
                a(f"v_pk_fma_f32 {g1}, {g1}, v[{VC2}:{VC2 + 1}], v[{VC1}:{VC1 + 1}]")
                a(f"v_pk_mul_f32 {g1}, {g1}, {x}")
            for i in range(4):
                a(f"v_exp_f32 v{G1 + i}, v{G1 + i}")
            for h2 in range(2):
                x = f"v[{r + 2 * h2}:{r + 2 * h2 + 1}]"
                a(f"v_pk_add_f32 v[{G1 + 2 * h2}:{G1 + 2 * h2 + 1}], v[{G1 + 2 * h2}:{G1 + 2 * h2 + 1}], {sp(S_C1)}")
                a(f"v_pk_mul_f32 {x}, {x}, v[{st + 2}:{st + 3}] op_sel:[0,1] op_sel_hi:[1,1]")
            for i in range(4):
                a(f"v_rcp_f32 v{G1 + i}, v{G1 + i}")
            a("s_nop 0")
            for h2 in range(2):
                x = f"v[{r + 2 * h2}:{r + 2 * h2 + 1}]"
                a(f"v_pk_mul_f32 {x}, {x}, v[{G1 + 2 * h2}:{G1 + 2 * h2 + 1}]")
            pk = PK + 4 * tb + (2 * (b % 2) if x4 else 0)
            a(f"v_cvt_pk_bf16_f32 v{pk}, v{r}, v{r + 1}")
            a(f"v_cvt_pk_bf16_f32 v{pk + 1}, v{r + 2}, v{r + 3}")
            if not x4:
                if tb == 0:
                    a(f"s_lshr_b32 s{S_TMP + 1}, s{S_MCOL}, 4")
                    a(f"s_add_u32 s{S_TMP + 1}, s{S_TMP + 1}, {b}")
                    a(f"s_and_b32 s{S_TMP + 2}, s{S_TMP + 1}, 1")
                    a(f"s_lshl_b32 s{S_TMP + 2}, s{S_TMP + 2}, 3")
                    a(f"s_lshr_b32 s{S_TMP + 1}, s{S_TMP + 1}, 1")
                    a(f"s_lshl_b32 s{S_TMP + 1}, s{S_TMP + 1}, 10")
                    a(f"s_add_u32 s{S_TMP + 1}, s{S_TMP + 1}, s{S_TMP + 2}")
                    a(f"s_add_u32 s{S_TMP + 1}, s{S_TMP + 1}, s{S_TYPEBASE}")
                a(f"s_add_u32 s{S_TMP + 3}, s{S_TMP + 1}, {tb * 48 * 1024}")
                a.vmem(f"buffer_store_dwordx2 v[{pk}:{pk + 1}], v{T + 3}, {srd(SRD_WS)}, s{S_TMP + 3} offen sc1", "st2")
            elif b == 1:
                if tb == 0:
                    a(f"s_lshr_b32 s{S_TMP + 1}, s{S_MCOL}, 5")
                    a(f"s_lshl_b32 s{S_TMP + 1}, s{S_TMP + 1}, 10")
                    a(f"s_add_u32 s{S_TMP + 1}, s{S_TMP + 1}, s{S_TYPEBASE}")
                a(f"s_add_u32 s{S_TMP + 3}, s{S_TMP + 1}, {tb * 48 * 1024}")
                a.vmem(f"buffer_store_dwordx4 v[{pk - 2}:{pk + 1}], v{T + 3}, {srd(SRD_WS)}, s{S_TMP + 3} offen sc1", "st2")


def body_p1(a, hooks=None, after_setup=None):
    hooks = hooks or {}
    stamp(a, 0)
    setup(a)
    if after_setup:
        after_setup(a)
    L_v, L_m, L_join, L_end = a.newlabel("p1v"), a.newlabel("p1m"), a.newlabel("p1join"), a.newlabel("p1end")
    a(f"s_cmp_ge_u32 s{S_CG}, 12")
    a(f"s_cbranch_scc1 {L_m}")
    m2_setup(a, 2)
    a(f"s_cmp_ge_u32 s{S_CG}, 8")
    a(f"s_cbranch_scc1 {L_v}")
    st = (list(a.vm), list(a.lg))
    first_pass(a, "T", False, 2, hooks)
    stamp(a, 1)
    epilogue_qk(a)
    st_qk = (list(a.vm), list(a.lg))
    a(f"s_branch {L_join}")
    a.label(L_v)
    a.vm, a.lg = list(st[0]), list(st[1])
    first_pass(a, "N", False, 2, hooks)
    stamp(a, 1)
    epilogue_v(a)
    assert a.vm == st_qk[0] and a.lg == st_qk[1], (a.vm, st_qk[0])
    a.label(L_join)
    stamp(a, 2)
    second_pass(a, 2)
    stamp(a, 3)
    if "qkv_done" in hooks:
        a("s_waitcnt vmcnt(0)")
        a.vm = []
        a("s_barrier")
        hooks["qkv_done"](a)
        hooks["init_wait"](a)
    a(f"s_lshl_b32 s{S_MCOL}, s{S_CC}, 5")
    a(f"s_add_u32 s{S_MCOL}, s{S_MCOL}, s{S_M2COL}")
    epilogue_mlp(a, 2, True)
    a(f"s_branch {L_end}")
    a.label(L_m)
    a.vm, a.lg = list(st[0]), list(st[1])
    m2_setup(a, 1)
    first_pass(a, "T", True, 1, hooks)
    stamp(a, 1)
    a(f"s_mul_i32 s{S_MCOL}, s{S_CC}, 80")
    a(f"s_add_u32 s{S_MCOL}, s{S_MCOL}, s{S_WCOL}")
    a("s_nop 7")
    if "init_wait" in hooks:
        hooks["init_wait"](a)
    epilogue_mlp(a, 5, False)
    a("s_barrier")
    stamp(a, 2)
    second_pass(a, 1)
    stamp(a, 3)
    a(f"s_lshl_b32 s{S_MCOL}, s{S_CC}, 4")
    a(f"s_add_u32 s{S_MCOL}, s{S_MCOL}, s{S_M2COL}")
    epilogue_mlp(a, 1, False)
    a.label(L_end)


def kernel_p1(name):
    a = Asm()
    a.kname = name
    prologue(a)
    body_p1(a)
    stamp(a, 4)
    a("s_waitcnt vmcnt(0)")
    stamp(a, 5)
    a("s_waitcnt vmcnt(0)")
    a.label("L_exit_" + name)
    a("s_endpgm")
    return kernel_header(name) + a.text(), kernel_desc(name, 512, 256)
```

```python
from common import *
from asmlib import Weaver

NS = 5
STG = 5120
NK = 17

S_TB, S_FB, S_AH, S_AO = 42, 43, 44, 45
S_WH, S_WOO, S_LB = 68, 69, 70
S_ROT = 83
S_T = 54
S_X = 85
S_Y = 101

V_WD = 120
V_RB = 125
V_AL = 126
V_PF = 127
V_L, V_T16, V_G = 1, 2, 3
ACC = 32
WB = 128
AO = 168
AH = 64
ET = 200


def setup(a, T):
    a(f"s_and_b32 s{S_T}, s{S_WG}, 7")
    a(f"s_lshr_b32 s{S_T + 1}, s{S_WG}, 3")
    a(f"s_lshr_b32 s{S_TB}, s{S_T}, 1")
    a(f"s_lshl_b32 s{S_TB}, s{S_TB}, 3")
    a(f"s_and_b32 s{S_T + 2}, s{S_T + 1}, 7")
    a(f"s_add_u32 s{S_TB}, s{S_TB}, s{S_T + 2}")
    a(f"s_and_b32 s{S_FB}, s{S_T}, 1")
    a(f"s_lshl_b32 s{S_FB}, s{S_FB}, 2")
    a(f"s_lshr_b32 s{S_T + 3}, s{S_T + 1}, 3")
    a(f"s_add_u32 s{S_FB}, s{S_FB}, s{S_T + 3}")
    a(f"s_mul_i32 s{S_ROT}, s{S_T + 3}, 3")
    a(f"s_add_u32 s{S_ROT}, s{S_ROT}, s{S_T + 2}")
    a(f"s_cmp_ge_u32 s{S_ROT}, 12")
    a(f"s_cselect_b32 s{S_T + 3}, 12, 0")
    a(f"s_sub_u32 s{S_ROT}, s{S_ROT}, s{S_T + 3}")
    a(f"v_and_b32 v{T + 3}, 63, v0")
    a(f"v_lshlrev_b32 v{V_AL}, 4, v{T + 3}")
    for q in range(5):
        a(f"v_add_u32 v{T}, {64 * q}, v{T + 3}")
        a(f"v_mul_u32_u24 v{T + 1}, 6554, v{T}")
        a(f"v_lshrrev_b32 v{T + 1}, 16, v{T + 1}")
        a(f"v_mul_u32_u24 v{T + 2}, 10, v{T + 1}")
        a(f"v_sub_u32 v{T + 2}, v{T}, v{T + 2}")
        a(f"v_lshlrev_b32 v{T + 2}, 4, v{T + 2}")
        a(f"v_mul_u32_u24 v{T + 1}, 1280, v{T + 1}")
        a(f"v_add_u32 v{V_WD + q}, v{T + 1}, v{T + 2}")
        if 0 < q < 4:
            a(f"v_subrev_u32 v{V_WD + q}, {1024 * q}, v{V_WD + q}")
    a(f"s_mul_i32 s{S_LB}, s{S_WAVE}, {NS * STG}")
    a(f"v_lshrrev_b32 v{T}, 2, v{T + 3}")
    a(f"v_mul_u32_u24 v{T}, 160, v{T}")
    a(f"v_and_b32 v{T + 1}, 3, v{T + 3}")
    a(f"v_lshl_add_u32 v{T}, v{T + 1}, 3, v{T}")
    a(f"v_add_u32 v{V_RB}, s{S_LB}, v{T}")
    a(f"s_mul_i32 s{S_AH}, s{S_TB}, {4 * 48}")
    a(f"s_mul_i32 s{S_T}, s{S_WAVE}, 12")
    a(f"s_add_u32 s{S_AH}, s{S_AH}, s{S_T}")
    a(f"s_lshl_b32 s{S_AH}, s{S_AH}, 10")
    a(f"s_add_u32 s{S_AH}, s{S_AH}, {WS_H}")
    a(f"s_mul_i32 s{S_AO}, s{S_TB}, {4 * 20}")
    a(f"s_mul_i32 s{S_T}, s{S_WAVE}, 5")
    a(f"s_add_u32 s{S_AO}, s{S_AO}, s{S_T}")
    a(f"s_lshl_b32 s{S_AO}, s{S_AO}, 10")
    a(f"s_add_u32 s{S_AO}, s{S_AO}, {WS_O}")
    a(f"s_mul_i32 s{S_T}, s{S_FB}, 160")
    a(f"s_mul_i32 s{S_WH}, s{S_WAVE}, {32 * 12 * 1280}")
    a(f"s_add_u32 s{S_WH}, s{S_WH}, s{S_T}")
    a(f"s_mul_i32 s{S_WOO}, s{S_WAVE}, {32 * 5 * 1280}")
    a(f"s_add_u32 s{S_WOO}, s{S_WOO}, s{S_T}")


def rot_ks(i, dst):
    return f"s_add_u32 s{dst}, s{S_ROT}, {i}\ns_cmp_ge_u32 s{dst}, 12\ns_cselect_b32 s{S_Y}, 12, 0\ns_sub_u32 s{dst}, s{dst}, s{S_Y}"


def dma_w(i, own_m0=False):
    st = (i % NS) * STG
    if i < 12:
        sr = SRD_W2
        pre = [rot_ks(i, S_X), f"s_mul_i32 s{S_X}, s{S_X}, {32 * 1280}", f"s_add_u32 s{S_X}, s{S_X}, s{S_WH}"]
    else:
        sr = SRD_WO
        pre = [f"s_add_u32 s{S_X}, s{S_WOO}, {(i - 12) * 32 * 1280}"]
    G = []
    for q in range(5):
        g = []
        if q == 0:
            g += pre + [f"s_add_u32 m0, s{S_LB}, {st}", "s_nop 0"]
        if q == 4:
            g += [f"s_add_u32 m0, s{S_LB}, {st + 4096}", "s_nop 0"]
        if own_m0 and 0 < q < 4:
            g += [f"s_add_u32 m0, s{S_LB}, {st}", "s_nop 0"]
        g.append(f"buffer_load_dwordx4 v{V_WD + q}, {srd(sr)}, s{S_X} offen offset:{1024 * q if q < 4 else 0} lds")
        G.append(g)
    return G


S_Z = 89


def act_h(i):
    G = []
    for u in range(4):
        g = []
        if u == 0:
            g += [rot_ks(i, S_Z), f"s_lshl_b32 s{S_Z}, s{S_Z}, 10", f"s_add_u32 s{S_Z}, s{S_Z}, s{S_AH}"]
        else:
            g += [f"s_add_u32 s{S_Z}, s{S_Z}, {48 * 1024}"]
        r = AH + 16 * i + 4 * u
        g.append(f"buffer_load_dwordx4 a[{r}:{r + 3}], v{V_AL}, {srd(SRD_WS)}, s{S_Z} offen sc1")
        G.append(g)
    return G


def act_o(i):
    G = []
    for u in range(4):
        r = AO + 16 * i + 4 * u
        G.append([f"s_add_u32 s{S_Z}, s{S_AO}, {(u * 20 + i) * 1024}",
                  f"buffer_load_dwordx4 v[{r}:{r + 3}], v{V_AL}, {srd(SRD_WS)}, s{S_Z} offen sc1"])
    return G


def l2_prefetch(T):
    G = []
    for e in range(2):
        g = [f"s_lshr_b32 s{S_X}, s{S_WG}, 3", f"s_lshl_b32 s{S_X}, s{S_X}, 2", f"s_add_u32 s{S_X}, s{S_X}, s{S_WAVE}",
             f"s_mul_i32 s{S_X}, s{S_X}, 85", f"s_add_u32 s{S_X}, s{S_X}, {64 * e}",
             f"v_lshrrev_b32 v{T}, 4, v{V_AL}", f"v_min_u32 v{T}, {84 - 64 * e}, v{T}" if e else "s_nop 0",
             f"v_add_u32 v{T}, s{S_X}, v{T}",
             f"v_mul_u32_u24 v{T + 1}, 13108, v{T}", f"v_lshrrev_b32 v{T + 1}, 16, v{T + 1}",
             f"v_mul_u32_u24 v{T + 2}, 5, v{T + 1}", f"v_sub_u32 v{T + 2}, v{T}, v{T + 2}",
             f"v_lshlrev_b32 v{T + 2}, 7, v{T + 2}", f"v_mul_u32_u24 v{T + 1}, 1280, v{T + 1}",
             f"v_add_u32 v{T + 1}, v{T + 1}, v{T + 2}",
             f"s_and_b32 s{S_X}, s{S_WG}, 1", f"s_mul_i32 s{S_X}, s{S_X}, 640", f"v_add_u32 v{T + 1}, s{S_X}, v{T + 1}",
             f"buffer_load_dword v{V_PF}, v{T + 1}, {srd(SRD_W2)}, 0 offen",
             f"v_subrev_u32 v{T + 2}, {1536 * 1280}, v{T + 1}",
             f"buffer_load_dword v{V_PF}, v{T + 2}, {srd(SRD_WO)}, 0 offen"]
        G.append(g)
    return G


def emit_group(a, g, tag):
    for ins in g:
        if ins.startswith("buffer_"):
            a.vmem(ins, tag)
        else:
            a(ins)


def prefetch_groups(T):
    L = [(g, "pf") for g in l2_prefetch(T)]
    for i in range(NS):
        L += [(g, ("w", i)) for g in dma_w(i, True)]
    for i in range(12):
        L += [(g, ("a", i)) for g in act_h(i)]
    return L


def wreads(i):
    wb = WB + 20 * (i % 2)
    st = (i % NS) * STG
    R = []
    for cb in range(5):
        for rd in range(2):
            R.append(f"ds_read_b64_tr_b16 v[{wb + 4 * cb + 2 * rd}:{wb + 4 * cb + 2 * rd + 1}], v{V_RB} offset:{st + 2560 * rd + 32 * cb}")
    return R


def afrag(i, u):
    if i < 12:
        r = AH + 16 * i + 4 * u
        return f"a[{r}:{r + 3}]"
    r = AO + 16 * (i - 12) + 4 * u
    return f"v[{r}:{r + 3}]"


def main(a, wait_o):
    for r in wreads(0):
        a.lds(r, ("r", 0))
    W = Weaver(a, cap=2)
    qr, qd = W.queue(), W.queue()

    def add(groups, tag, p0, step):
        p = p0
        for g in groups:
            for ins in g:
                if ins.startswith("buffer_"):
                    qd.append((p, (lambda ins=ins, tag=tag: a.vmem(ins, tag)), 1))
                else:
                    qd.append((p - 1, (lambda ins=ins: a(ins)), 1 + ins.count("\n")))
            p += step
    for i in range(NK):
        a.wait_lg(("r", i))
        if i == 11:
            W.flush(qd)
            wait_o(a)
            for k in range(5):
                for g in act_o(k):
                    emit_group(a, g, ("o", k))
        if i + NS < NK:
            add(dma_w(i + NS), ("w", i + NS), 20 * i + 2, 4)
        tags = []
        if i >= 12:
            tags.append(("o", i - 12))
        if i + 1 < NK and i + 1 >= NS:
            tags.append(("w", i + 1))
        if tags:
            a.wait_vm(tags)
        if i + 1 < NK:
            for k, r in enumerate(wreads(i + 1)):
                qr.append((20 * i + k, (lambda r=r, i=i: a.lds(r, ("r", i + 1))), 1))
        wb = WB + 20 * (i % 2)
        for cb in range(5):
            for u in range(4):
                r = ACC + 16 * cb + 4 * u
                cin = f"v[{r}:{r + 3}]" if i else "0"
                W.step(f"v_mfma_f32_16x16x32_bf16 v[{r}:{r + 3}], v[{wb + 4 * cb}:{wb + 4 * cb + 3}], {afrag(i, u)}, {cin}")
        W.flush(qr)
    W.flush()


def epilogue_pre(a):
    T = ET + 32
    OMG, B2, AD, OA = 232, 238, 112, 118
    return


def epilogue(a):
    T = ET
    a(f"v_and_b32 v{V_L}, 63, v0")
    a(f"v_and_b32 v{V_T16}, 15, v0")
    a(f"v_lshrrev_b32 v{V_G}, 4, v{V_L}")
    OMG, B2, AD, OA = T, T + 6, T + 16, T + 22
    a(f"s_lshl_b32 s{S_T}, s{S_TB}, 6")
    a(f"s_lshl_b32 s{S_T + 1}, s{S_WAVE}, 4")
    a(f"s_add_u32 s{S_T}, s{S_T}, s{S_T + 1}")
    a(f"s_mul_i32 s{S_T + 2}, s{S_FB}, 160")
    a("s_nop 4")
    for m in range(5):
        t = T + 28
        a(f"v_add_u32 v{t}, {64 * m}, v{V_L}")
        a(f"v_mul_u32_u24 v{t + 1}, 3277, v{t}")
        a(f"v_lshrrev_b32 v{t + 1}, 16, v{t + 1}")
        a(f"v_mul_u32_u24 v{t + 2}, 20, v{t + 1}")
        a(f"v_sub_u32 v{t + 2}, v{t}, v{t + 2}")
        a(f"v_add_u32 v{t + 3}, s{S_T + 1}, v{t + 1}")
        a(f"v_mul_u32_u24 v{t + 3}, 320, v{t + 3}")
        a(f"v_lshl_add_u32 v{AD + m}, v{t + 2}, 4, v{t + 3}")
        a(f"v_add_u32 v{t + 1}, s{S_T}, v{t + 1}")
        a(f"v_lshlrev_b32 v{t + 3}, 4, v{t + 1}")
        a.vmem(f"buffer_load_dword v{OMG + m}, v{t + 3}, {srd(SRD_WS)}, 0 offen offset:{WS_STATS + 12} sc1", "e")
        a(f"v_lshlrev_b32 v{t + 2}, 3, v{t + 2}")
        a(f"v_add_u32 v{t + 2}, s{S_T + 2}, v{t + 2}")
        a.vmem(f"global_load_dwordx2 v[{B2 + 2 * m}:{B2 + 2 * m + 1}], v{t + 2}, {sp(S_B2)}", "e")
        a(f"v_mul_u32_u24 v{t + 1}, 1280, v{t + 1}")
        a(f"v_add_u32 v{OA + m}, v{t + 1}, v{t + 2}")
    a(f"s_mul_i32 s{S_T + 3}, s{S_WAVE}, 20480")
    a(f"v_mul_u32_u24 v{T + 28}, 320, v{V_T16}")
    a(f"v_lshl_add_u32 v{T + 28}, v{V_G}, 4, v{T + 28}")
    a(f"v_add_u32 v{T + 28}, s{S_T + 3}, v{T + 28}")
    a("s_waitcnt lgkmcnt(0)")
    a.lg = []
    a("s_barrier")
    for cb in range(5):
        for u in range(4):
            r = ACC + 16 * cb + 4 * u
            a.lds(f"ds_write_b128 v{T + 28}, v[{r}:{r + 3}] offset:{u * 16 * 320 + cb * 64}", "pw")
    a.wait_lg()
    a("s_barrier")
    SUM = ACC
    for m in range(5):
        for w in range(4):
            r = SUM + 16 * m + 4 * w
            a.lds(f"ds_read_b128 v[{r}:{r + 3}], v{AD + m} offset:{w * 20480}", ("s", m))
    a.wait_vm("e")
    for m in range(5):
        a.wait_lg(("s", m))
        r = SUM + 16 * m
        for h in range(2):
            a(f"v_pk_add_f32 v[{r + 2 * h}:{r + 2 * h + 1}], v[{r + 2 * h}:{r + 2 * h + 1}], v[{r + 4 + 2 * h}:{r + 5 + 2 * h}]")
            a(f"v_pk_add_f32 v[{r + 8 + 2 * h}:{r + 9 + 2 * h}], v[{r + 8 + 2 * h}:{r + 9 + 2 * h}], v[{r + 12 + 2 * h}:{r + 13 + 2 * h}]")
        b = B2 + 2 * m
        t = T + 28
        a(f"v_lshlrev_b32 v{t}, 16, v{b}")
        a(f"v_and_b32 v{t + 1}, 0xffff0000, v{b}")
        a(f"v_lshlrev_b32 v{t + 2}, 16, v{b + 1}")
        a(f"v_and_b32 v{t + 3}, 0xffff0000, v{b + 1}")
        for h in range(2):
            a(f"v_pk_add_f32 v[{r + 2 * h}:{r + 2 * h + 1}], v[{r + 2 * h}:{r + 2 * h + 1}], v[{r + 8 + 2 * h}:{r + 9 + 2 * h}]")
        for i in range(4):
            a(f"v_fmac_f32 v{r + i}, v{OMG + m}, v{t + i}")
        a(f"v_cvt_pk_bf16_f32 v{r + 4}, v{r}, v{r + 1}")
        a(f"v_cvt_pk_bf16_f32 v{r + 5}, v{r + 2}, v{r + 3}")
        a.vmem(f"buffer_store_dwordx2 v[{r + 4}:{r + 5}], v{OA + m}, {srd(SRD_OUT)}, 0 offen", "o")


def body_p4(a, wait_o):
    stamp(a, 16)
    main(a, wait_o)
    stamp(a, 17)
    a("s_nop 7")
    epilogue(a)
```

```python
import sys, os
sys.path.insert(0, os.path.dirname(os.path.abspath(__file__)))
from common import *
from asmlib import check_hazards
import ph_stats, ph_p1, ph_attn, ph_p4, merged

HEADER = open("gated_mix__softmax_full_mha__mixer_channel_mlp__prompt.s.ref").read().split("; Override launch")[0]

def build(kernels, launches):
    txt = HEADER
    for (k, g, b, l) in launches:
        if k is None:
            txt += f"; @launch grid=({g},1,1) block=({b},1,1) lds={l}\n"
        else:
            txt += f"; @launch kernel={k} grid=({g},1,1) block=({b},1,1) lds={l}\n"
    txt += '.amdgcn_target "amdgcn-amd-amdhsa--gfx950"\n.text\n'
    for body, desc in kernels:
        check_hazards(body)
        txt += body
    txt += '.section .rodata,"a"\n'
    for body, desc in kernels:
        txt += ".p2align 6\n" + desc
    return txt

if __name__ == "__main__":
    import common
    if "--prof" in sys.argv:
        common.PROFILE_ON[0] = True
        sys.argv.remove("--prof")
    for arg in list(sys.argv):
        if arg.startswith("--exp="):
            ph_attn.EXP.update(arg[6:].split(","))
            sys.argv.remove(arg)
    out = sys.argv[1] if len(sys.argv) > 1 and not sys.argv[1].startswith("--") else "out.s"
    if True:
        open(out, "w").write(build([merged.kernel()], [(None, 256, 256, 163840)]))
        print("wrote", out, os.path.getsize(out))
        sys.exit(0)
```

```python
from common import *
import ph_stats, ph_p1 as p1, ph_attn as at, ph_p4 as p4

CODE_PF = [True]
KNAME = "gated_mix__softmax_full_mha__mixer_channel_mlp__prompt_kernel"
S_F1, S_F2, S_F3 = 98, 99, 100


def flag_offsets(a):
    t = 88
    a(f"s_and_b32 s{t}, s{S_WG}, 7")
    a(f"s_lshr_b32 s{t + 1}, s{S_WG}, 3")
    a(f"s_lshl_b32 s{S_F3}, s{t}, 2")
    a(f"s_lshr_b32 s{S_F1}, s{t + 1}, 3")
    a(f"s_add_u32 s{S_F3}, s{S_F3}, s{S_F1}")
    a(f"s_and_b32 s{S_F1}, s{t + 1}, 7")
    a(f"s_lshl_b32 s{S_F1}, s{S_F1}, 5")
    a(f"s_add_u32 s{S_F3}, s{S_F3}, s{S_F1}")
    a(f"s_lshl_b32 s{S_F3}, s{S_F3}, 2")
    a(f"s_add_u32 s{S_F3}, s{S_F3}, {F3}")
    a(f"s_lshl_b32 s{S_F1}, s{p1.S_CG}, 4")
    a(f"s_add_u32 s{S_F1}, s{S_F1}, s{p1.S_RB}")
    a(f"s_lshl_b32 s{S_F1}, s{S_F1}, 2")
    a(f"s_add_u32 s{S_F1}, s{S_F1}, {F1}")
    a(f"s_lshl_b32 s{S_F2}, s{p1.S_RB}, 4")
    a(f"s_add_u32 s{S_F2}, s{S_F2}, s{p1.S_CG}")
    a(f"s_lshl_b32 s{S_F2}, s{S_F2}, 2")
    a(f"s_add_u32 s{S_F2}, s{S_F2}, {F2}")


def zero_flags(a, vt):
    L = a.newlabel("nozero")
    a(f"s_cmp_lg_u32 s{S_WAVE}, 0")
    a(f"s_cbranch_scc1 {L}")
    a(f"s_mov_b64 {sp(S_SAVE)}, exec")
    a("s_mov_b64 exec, 1")
    a(f"v_mov_b32 v{vt}, 0")
    for s in (S_F1, S_F2, S_F3):
        a(f"buffer_store_dword v{vt}, v{vt}, {srd(SRD_WS)}, s{s} offen sc1")
    a(f"s_mov_b64 exec, {sp(S_SAVE)}")
    a.label(L)


def init_arrive(a, vt):
    L = a.newlabel("noarr")
    a(f"s_cmp_lg_u32 s{S_WAVE}, 0")
    a(f"s_cbranch_scc1 {L}")
    a(f"s_mov_b64 {sp(S_SAVE)}, exec")
    a("s_mov_b64 exec, 1")
    a(f"s_and_b32 s88, s{S_WG}, 3")
    a("s_lshl_b32 s88, s88, 6")
    a(f"v_mov_b32 v{vt}, s88")
    a(f"v_mov_b32 v{vt + 1}, 1")
    a(f"global_atomic_add v{vt}, v{vt + 1}, {sp(S_DBG)}")
    a(f"s_mov_b64 exec, {sp(S_SAVE)}")
    a.label(L)


def init_wait(a, vt):
    a(f"v_and_b32 v{vt + 2}, 3, v0")
    a(f"v_lshlrev_b32 v{vt + 2}, 6, v{vt + 2}")
    poll(a, f"global_load_dword v{vt}, v{vt + 2}, {sp(S_DBG)} sc1", 4, 64, vt, 0xE1, ge=True)


def wait_qkv(a, vt):
    g = 88
    a(f"s_lshr_b32 s{g}, s{at.S_HEAD}, 3")
    a(f"v_and_b32 v{vt + 2}, 63, v0")
    a(f"v_subrev_u32 v{vt + 3}, 2, v{vt + 2}")
    a(f"s_add_u32 s{g + 1}, s{g}, 4")
    a(f"s_lshl_b32 s{g + 1}, s{g + 1}, 4")
    a(f"v_lshrrev_b32 v{vt + 4}, 4, v{vt + 3}")
    a(f"v_lshlrev_b32 v{vt + 4}, 6, v{vt + 4}")
    a(f"v_and_b32 v{vt + 3}, 15, v{vt + 3}")
    a(f"v_add3_u32 v{vt + 3}, v{vt + 3}, v{vt + 4}, s{g + 1}")
    a(f"s_lshl_b32 s{g + 1}, s{g}, 4")
    a(f"s_lshl_b32 s{g + 2}, s{at.S_QB}, 1")
    a(f"s_add_u32 s{g + 1}, s{g + 1}, s{g + 2}")
    a(f"v_add_u32 v{vt + 4}, s{g + 1}, v{vt + 2}")
    a(f"v_cmp_gt_u32 vcc, 2, v{vt + 2}")
    a("s_nop 1")
    a(f"v_cndmask_b32 v{vt + 3}, v{vt + 3}, v{vt + 4}, vcc")
    a(f"v_lshlrev_b32 v{vt + 2}, 2, v{vt + 3}")
    a(f"v_add_u32 v{vt + 2}, {F1}, v{vt + 2}")
    poll(a, f"buffer_load_dword v{vt}, v{vt + 2}, {srd(SRD_WS)}, 0 offen sc1", 34, 1, vt, 0xE2)


def h_flags_addr(a, vt):
    a(f"s_lshr_b32 s88, s{p4.S_TB}, 1")
    a("s_lshl_b32 s88, s88, 6")
    a(f"s_add_u32 s88, s88, {F2}")
    a(f"v_and_b32 v{vt + 2}, 15, v0")
    a(f"v_lshlrev_b32 v{vt + 2}, 2, v{vt + 2}")
    a(f"v_add_u32 v{vt + 2}, s88, v{vt + 2}")
    return f"buffer_load_dword v{vt}, v{vt + 2}, {srd(SRD_WS)}, 0 offen sc1"


def wait_o(a):
    vt = 240
    a(f"s_lshr_b32 s88, s{p4.S_TB}, 2")
    a("s_lshl_b32 s88, s88, 7")
    a(f"s_add_u32 s88, s88, {F3}")
    a(f"v_and_b32 v{vt + 2}, 31, v0")
    a(f"v_lshlrev_b32 v{vt + 2}, 2, v{vt + 2}")
    a(f"v_add_u32 v{vt + 2}, s88, v{vt + 2}")
    poll(a, f"buffer_load_dword v{vt}, v{vt + 2}, {srd(SRD_WS)}, 0 offen sc1", 32, 1, vt, 0xE4)


def code_prefetch(a):
    a("s_getpc_b64 s[90:91]")
    a.label("L_pc_base")
    a("s_lshr_b32 s92, s2, 3")
    a("s_and_b32 s92, s92, 31")
    a("s_mul_i32 s92, s92, (L_code_end-L_pc_base+4095)/4096")
    a("v_add_u32 v2, s92, v0")
    a("v_lshlrev_b32 v2, 7, v2")
    a("v_min_u32 v2, L_code_end-L_pc_base-4, v2")
    a("v_cmp_gt_u32 vcc, (L_code_end-L_pc_base+4095)/4096, v0")
    a("s_and_saveexec_b64 s[92:93], vcc")
    a("s_cbranch_execz L_pf_skip")
    a("global_load_dword v255, v2, s[90:91]")
    a.label("L_pf_skip")
    a("s_mov_b64 exec, s[92:93]")


def kernel():
    a = Asm()
    a.kname = KNAME
    if CODE_PF[0]:
        code_prefetch(a)
    prologue(a)
    hooks = {}

    def h_start(a):
        ph_stats.stats_compute(a)
        zero_flags(a, 200)
    def h_chunk(a, c):
        if c == 4:
            init_arrive(a, 240)
    hooks["start"] = h_start
    hooks["chunk"] = h_chunk
    hooks["init_wait"] = lambda a: init_wait(a, 240)

    def h_qkv_done(a):
        set_flag(a, S_F1, 240)
    hooks["qkv_done"] = h_qkv_done

    ph_stats.stats_issue(a)
    p1.body_p1(a, hooks, lambda a: flag_offsets(a))
    stamp(a, 4)
    def a_ready(a):
        wait_qkv(a, 240)
    def a_first_barrier(a):
        set_flag(a, S_F2, 240)
    groups = p4.prefetch_groups(246)
    state = {}

    def fillers(n):
        L = []
        if n == 16:
            def f():
                state["load"] = h_flags_addr(a, 240)
                poll_begin(a, state["load"], 16)
            L.append(f)
        if n == 22:
            L.append(lambda: poll_end(a, state["load"], 16, 1, 240, 0xE3))
        if n >= 24 and groups:
            g, tag = groups.pop(0)
            L.append(lambda g=g, tag=tag: p4.emit_group(a, g, tag))
        return L
    at.body_attn(a, True, a_ready, a_first_barrier, lambda a: p4.setup(a, 246), fillers)
    assert not groups
    a("s_waitcnt vmcnt(0)")
    a.vm = []
    a("s_barrier")
    set_flag(a, S_F3, 240)
    stamp(a, 12)
    p4.body_p4(a, wait_o)
    a("s_waitcnt vmcnt(0)")
    stamp(a, 18)
    a("s_waitcnt vmcnt(0)")
    a.label("L_exit_" + KNAME)
    a("s_endpgm")
    a.label("L_code_end")
    return kernel_header(KNAME) + a.text(), kernel_desc(KNAME, 512, 256)
```

```python
import sys
def kernel(body, iters, block, info, units, vgpr=128, pre=""):
    return f"""; @launch grid=(256,1,1) block=({block},1,1) lds=102400
.amdgcn_target "amdgcn-amd-amdhsa--gfx950"
.text
.globl mb_kernel
.p2align 8
.type mb_kernel,@function
mb_kernel:
    s_load_dwordx2 s[4:5], s[0:1], 0
    s_load_dwordx2 s[6:7], s[0:1], 8
    v_lshrrev_b32 v1, 6, v0
    s_nop 1
    v_readfirstlane_b32 s12, v1
    s_waitcnt lgkmcnt(0)
    s_mov_b32 s8, s4
    s_mov_b32 s9, s5
    s_mov_b32 s10, 0x1000000
    s_mov_b32 s11, 0x00020000
    v_lshlrev_b32 v2, 4, v0
    v_and_b32 v2, 0xffff, v2
    global_load_dwordx4 v[4:7], v2, s[6:7]
    global_load_dwordx4 v[8:11], v2, s[6:7] offset:16
    s_waitcnt vmcnt(0)
{pre}
    s_barrier
    s_mov_b32 s13, {iters}
    s_memtime s[14:15]
    s_memrealtime s[18:19]
    s_waitcnt lgkmcnt(0)
.p2align 6
L_loop:
{body}
    s_sub_u32 s13, s13, 1
    s_cmp_lg_u32 s13, 0
    s_cbranch_scc1 L_loop
    s_memtime s[16:17]
    s_memrealtime s[20:21]
    s_waitcnt lgkmcnt(0)
    s_sub_u32 s16, s16, s14
    s_sub_u32 s20, s20, s18
    s_mul_i32 s22, s2, {block//64}
    s_add_u32 s22, s22, s12
    s_lshl_b32 s22, s22, 4
    v_mov_b32 v20, s16
    v_mov_b32 v21, s20
    v_mov_b32 v22, 0
    v_mov_b32 v23, 0
    v_mov_b32 v24, s22
    v_cmp_eq_u32 vcc, 0, v0
    v_and_b32 v25, 63, v0
    v_cmp_eq_u32 vcc, 0, v25
    s_and_saveexec_b64 s[24:25], vcc
    buffer_store_dwordx4 v[20:23], v24, s[8:11], 0 offen
    s_waitcnt vmcnt(0)
    s_endpgm
.section .rodata,"a"
.p2align 6
.amdhsa_kernel mb_kernel
  .amdhsa_next_free_vgpr {vgpr}
  .amdhsa_next_free_sgpr 96
  .amdhsa_accum_offset {vgpr}
  .amdhsa_group_segment_fixed_size 0
  .amdhsa_kernarg_size 16
  .amdhsa_user_sgpr_count 2
  .amdhsa_user_sgpr_kernarg_segment_ptr 1
  .amdhsa_system_sgpr_workgroup_id_x 1
.end_amdhsa_kernel
"""
def init_regs(lo, hi):
    return "\n".join(f"    v_mov_b32 v{i}, 0x3c003c00" if i%2 else f"    v_mov_b32 v{i}, 0xbf000000" for i in range(lo, hi))

files = []
def emit(name, body, block, info, units, iters=2000, vgpr=128):
    fn = f"{name}_b{block}.s"
    rep = 8
    open(fn, "w").write(kernel("\n".join([body]*rep), iters//rep, block, info, units*(iters//rep)*rep, vgpr, pre=init_regs(28, vgpr)))
    files.append(fn)

exp16 = "\n".join(f"    v_exp_f32 v{64+i}, v{32+i}" for i in range(16))
fma16 = "\n".join(f"    v_fma_f32 v{64+i}, v{32+i}, v{32+i}, v{48+i}" for i in range(16))
add16 = "\n".join(f"    v_add_f32 v{64+i}, v{32+i}, v{48+i}" for i in range(16))
cvt16 = "\n".join(f"    v_cvt_pk_bf16_f32 v{64+i}, v{32+i}, v{48+i}" for i in range(16))
pkfma16 = "\n".join(f"    v_pk_fma_f32 v[{64+2*i}:{65+2*i}], v[{32+2*i}:{33+2*i}], v[{32+2*i}:{33+2*i}], v[{32+2*i}:{33+2*i}]" for i in range(8))
mfma4 = "\n".join(f"    v_mfma_f32_32x32x16_bf16 v[{64+16*(i%2)}:{79+16*(i%2)}], v[4:7], v[8:11], v[{64+16*(i%2)}:{79+16*(i%2)}]" for i in range(4))
if __name__ == "__main__":
  pass
for block in ((256, 512, 1024) if __name__ == "__main__" else ()):
    emit("exp16", exp16, block, "16 v_exp_f32 / unit = 1 instr", 16)
    emit("fma16", fma16, block, "16 v_fma_f32", 16)
    emit("add16", add16, block, "16 v_add_f32", 16)
    emit("cvt16", cvt16, block, "16 v_cvt_pk_bf16", 16)
    emit("pkfma8", pkfma16, block, "8 v_pk_fma_f32", 8)
    emit("mfma4", mfma4, block, "4 mfma 32x32x16", 4)
    b = "\n".join(f"    v_exp_f32 v{64+i}, v{32+i}\n    v_add_f32 v{80+i}, v{32+i}, v{48+i}" for i in range(16))
    emit("expadd", b, block, "16x(exp+add) unit = pair", 16)
if __name__ == "__main__": print(" ".join(files))
```

```python
from gen_mb1 import kernel, init_regs
files = []
def emit(name, body, block, info, units, iters, vgpr=256, rep=1, pre=""):
    fn = f"{name}_b{block}.s"
    k = kernel("\n".join([body]*rep), iters//rep, block, info, units*(iters//rep)*rep, vgpr, pre=init_regs(28, 200)+"\n"+pre)
    open(fn, "w").write(k)
    files.append(fn)
QA, QB = 100, 108
F = [(120, 124, 128, 132), (140, 144, 148, 152)]
SA, SB = 32, 48
OA, OB = 64, 80
PA, PB = 160, 168
def mf16(d,a,b,c): return f"    v_mfma_f32_32x32x16_bf16 v[{d}:{d+15}], v[{a}:{a+3}], v[{b}:{b+3}], {c}"
def mf8(d,a,b,c): return f"    v_mfma_f32_32x32x8_bf16 v[{d}:{d+15}], v[{a}:{a+1}], v[{b}:{b+1}], {c}"
def vr(r,n): return f"v[{r}:{r+n-1}]"
def half(Sx, Px, So, Qo, Oo, Po, fr, extra):
    Klo, Khi, V0, V1 = fr
    mf = [mf16(So, Klo, Qo, "0"), mf8(So, Khi, Qo+4, vr(So,16)), mf16(Oo, V0, Po, vr(Oo,16)), mf16(Oo, V1, Po+4, vr(Oo,16))]
    L = []
    for g in range(4):
        L.append(mf[g])
        for j in range(4):
            L.append(f"    v_exp_f32 v{Sx+4*g+j}, v{Sx+4*g+j}")
            if extra.get((g,j)): L += extra[(g,j)]
        if g > 0:
            for j in range(2):
                L.append(f"    v_cvt_pk_bf16_f32 v{Px+2*(g-1)+j}, v{Sx+4*(g-1)+2*j}, v{Sx+4*(g-1)+2*j+1}")
    for j in range(2):
        L.append(f"    v_cvt_pk_bf16_f32 v{Px+6+j}, v{Sx+12+2*j}, v{Sx+12+2*j+1}")
    return L
def step(i, lds=True, wait=True, toff=0):
    cur, nxt = F[i%2], F[(i+1)%2]
    off = toff
    exA, exB = {}, {}
    if lds:
        exB[(0,1)] = [f"    ds_read_b128 {vr(nxt[0],4)}, v2 offset:{off}"]
        exB[(1,1)] = [f"    ds_read_b64 {vr(nxt[1],2)}, v3 offset:{off+1024}"]
        exB[(2,1)] = [f"    ds_read_b128 {vr(nxt[2],4)}, v2 offset:{off+1536}"]
        exB[(3,1)] = [f"    ds_read_b128 {vr(nxt[3],4)}, v2 offset:{off+2560}"]
    L = []
    L += half(SB, PB, SA, QA, OA, PA, cur, exB)
    L += half(SA, PA, SB, QB, OB, PB, cur, exA)
    if lds and wait: L.append("    s_waitcnt lgkmcnt(0)")
    return "\n".join(L)
pre = "    v_and_b32 v2, 63, v0\n    v_lshlrev_b32 v3, 3, v2\n    v_lshlrev_b32 v2, 4, v2\n"
if __name__ == "__main__":
  pass
for nm, kw in () if __name__ != "__main__" else (("nolds", dict(lds=False)), ("lds", dict(lds=True))):
    body = "\n".join(step(i, toff=(i*3584), **kw) for i in range(8))
    emit("at2_"+nm, body, 256, f"2 q-tiles/wave {nm}; unit=tile", 16, 8, pre=pre)
    emit("at2L_"+nm, body, 256, f"2 q-tiles/wave {nm}; unit=tile long", 16, 100, pre=pre)
if __name__ == "__main__":
  body = "\n".join(step(i, toff=((i%8)*3584)) for i in range(64))
if __name__ == "__main__": emit("at2_unrolled", body, 256, "64 steps straight line; unit=tile", 128, 1, pre=pre)
if __name__ == "__main__": print(" ".join(files))
```

```python
from gen_mb1 import kernel, init_regs
import gen_mb6 as g6
import re
files = []
def emit(name, body, info, units, iters, pre):
    fn = f"{name}_b256.s"
    k = kernel(body, iters, 256, info, units*iters, 256, pre=init_regs(28, 200)+"\n"+pre)
    k = k.replace("lds=102400","lds=160000")
    open(fn, "w").write(k); files.append(fn)
pre = """    v_and_b32 v2, 63, v0
    v_lshlrev_b32 v3, 3, v2
    v_lshlrev_b32 v2, 4, v2
    s_mov_b32 s40, s6
    s_mov_b32 s41, s7
    s_mov_b32 s42, 0x1000000
    s_mov_b32 s43, 0x00020000
    s_mov_b32 s44, s6
    s_or_b32 s45, s7, 0x00100000
    s_mov_b32 s46, 0x100000
    s_mov_b32 s47, 0x00820000
    s_and_b32 s48, s2, 7
    s_lshl_b32 s48, s48, 18
    s_lshl_b32 s49, s12, 12
    s_add_u32 s48, s48, s49
    s_lshl_b32 s50, s12, 13
    s_add_u32 s50, s50, 65536
    s_mov_b32 m0, s50
"""
base = "\n".join(g6.step(i, toff=(i*3584)) for i in range(8))
def after_mfma(s):
    lines = s.split("\n"); out=[]
    reads=[l for l in lines if "ds_read" in l]
    ri=0; cnt=0
    for l in lines:
        if "ds_read" in l: continue
        out.append(l)
        if "v_mfma" in l:
            if cnt%8<4: out.append(reads[ri]); ri+=1
            cnt+=1
    return "\n".join(out)
b = after_mfma(base)
def addv(s, ins, every):
    out=[]; c=0; k=0
    for l in s.split("\n"):
        out.append(l)
        if "v_mfma" in l:
            c+=1
            if c % every == 0:
                out.append("    " + ins(k)); k+=1
    out.append("    s_waitcnt vmcnt(8)")
    return "\n".join(out)
emit("c_none", b, "baseline; unit = tile", 16, 20, pre)
emit("c_dma_offen", addv(b, lambda k: f"buffer_load_dwordx4 v2, s[40:43], s48 offen offset:{1024*(k%4)} lds", 4), "1 DMA offen per tile (half-step)", 16, 20, pre)
emit("c_dma_tid", addv(b, lambda k: f"buffer_load_dwordx4 off, s[44:47], s48 offset:{1024*(k%4)} lds", 4), "1 DMA add_tid per tile", 16, 20, pre)
emit("c_reg_offen", addv(b, lambda k: f"buffer_load_dwordx4 v[{200+4*(k%8)}:{203+4*(k%8)}], v2, s[40:43], s48 offen offset:{1024*(k%4)}", 4), "1 reg load offen per tile", 16, 20, pre)
emit("c_reg_tid", addv(b, lambda k: f"buffer_load_dwordx4 v[{200+4*(k%8)}:{203+4*(k%8)}], off, s[44:47], s48 offset:{1024*(k%4)}", 4), "1 reg load add_tid per tile", 16, 20, pre)
emit("c_glob_saddr", addv(b, lambda k: f"global_load_dwordx4 v[{200+4*(k%8)}:{203+4*(k%8)}], v2, s[6:7] offset:{1024*(k%4)}", 4), "1 global load saddr per tile", 16, 20, pre)
emit("c_snop", addv(b, lambda k: f"s_nop 0", 4), "1 s_nop per tile", 16, 20, pre)
print(" ".join(files))
```
